```python
import torch

def _softmax(x, axis=-1):
    return torch.softmax(x, dim=axis)
def _gelu(x):
    return torch.nn.functional.gelu(x, approximate="tanh")
def _silu(x):
    return torch.nn.functional.silu(x)
def _sigmoid(x):
    return torch.sigmoid(x)
def _layernorm(x, axis=-1, eps=1e-5):
    m = x.mean(dim=axis, keepdim=True)
    v = x.var(dim=axis, keepdim=True, unbiased=False)
    return (x - m) / torch.sqrt(v + eps)
def _scatter_add(tgt, idx, src, axis=0):
    return tgt.clone().index_add_(axis, idx, src)
def _segment_sum(src, seg, n):
    out = torch.zeros((n,) + src.shape[1:], dtype=src.dtype)
    return out.index_add_(0, seg, src)
def _pad(x, pw):
    flat = tuple(v for pair in reversed(pw) for v in pair)
    return torch.nn.functional.pad(x, flat)

kernel_name = 'parallel_sum__compressed_kv_cla__glu_gated_swiglu__decode'

def setup_inputs():

    _w = (lambda a: (lambda t: t.to(torch.bfloat16) if t.is_floating_point() else t)(torch.as_tensor(a)))
    def _A_setup():
        B, H, Sq, Sk, D, M = 4, 32, 1, 4096, 128, 576
        Dc = 4 * D
        return {
            "x": _w((lambda *s: torch.randn(*s, dtype=torch.bfloat16) * 0.05)(B, Sq, M)),
            "c_kv": _w((lambda *s: torch.randn(*s, dtype=torch.bfloat16) * 0.8)(B, Sk, Dc)),
            "w_q": _w((lambda *s: torch.randn(*s, dtype=torch.bfloat16) * 1.6)(M, H, D) * (M ** -0.5)),
            "w_uk": _w((lambda *s: torch.randn(*s, dtype=torch.bfloat16) * 1.6)(Dc, H, D) * (Dc ** -0.5)),
            "w_uv": _w((lambda *s: torch.randn(*s, dtype=torch.bfloat16) * 0.8)(Dc, H, D) * (Dc ** -0.5)),
            "w_o": _w((lambda *s: torch.randn(*s, dtype=torch.bfloat16) * 0.8)(H, D, M) * ((H * D) ** -0.5)),
        }
    _A_in = _A_setup()

    def _B_setup():
        B, S, D, F = 4, 1, 576, 4608
        return {
            "x": _w((lambda *s: torch.randn(*s, dtype=torch.bfloat16) * 0.05)(B, S, D)),
            "w1": _w((lambda *s: torch.randn(*s, dtype=torch.bfloat16) * 0.4)(D, F) * (2.0 / D) ** 0.5),
            "w3": _w((lambda *s: torch.randn(*s, dtype=torch.bfloat16) * 0.4)(D, F) * (2.0 / D) ** 0.5),
            "w2": _w((lambda *s: torch.randn(*s, dtype=torch.bfloat16) * 0.4)(F, D) * (2.0 / F) ** 0.5),
        }
    _B_in = _B_setup()

    return {
        "A_x": _A_in["x"],
        "A_c_kv": _A_in["c_kv"],
        "A_w_q": _A_in["w_q"],
        "A_w_uk": _A_in["w_uk"],
        "A_w_uv": _A_in["w_uv"],
        "A_w_o": _A_in["w_o"],
        "B_x": _B_in["x"],
        "B_w1": _B_in["w1"],
        "B_w3": _B_in["w3"],
        "B_w2": _B_in["w2"],
    }

def reference(A_x, A_c_kv, A_w_q, A_w_uk, A_w_uv, A_w_o, B_x, B_w1, B_w3, B_w2):
    def _A_ref(x, c_kv, w_q, w_uk, w_uv, w_o):
        B, Sq, M = x.shape[0], x.shape[1], x.shape[2]
        Sk = c_kv.shape[1]
        H, D = w_q.shape[1], w_q.shape[2]
        q = torch.einsum("bqm,mhd->bhqd", x, w_q)
        k = torch.einsum("bkc,chd->bhkd", c_kv, w_uk)
        v = torch.einsum("bkc,chd->bhkd", c_kv, w_uv)
        scores = torch.einsum("bhqd,bhkd->bhqk", q, k) * (D ** -0.5)
        off = Sk - Sq
        qi = torch.arange(Sq)[:, None]
        kj = torch.arange(Sk)[None, :]
        cmask = kj <= (qi + off)
        scores = torch.where(cmask[None, None], scores, -1e9)
        p = _softmax(scores, axis=-1)
        ctx = torch.einsum("bhqk,bhkd->bhqd", p, v)
        return torch.einsum("bhqd,hdm->bqm", ctx, w_o)

    def _B_ref(x, w1, w3, w2):
        gate = torch.einsum("bsd,df->bsf", x, w1)
        up = torch.einsum("bsd,df->bsf", x, w3)
        h = _silu(gate) * up
        out = torch.einsum("bsf,fd->bsd", h, w2)
        return out

    x = A_x
    xn = _layernorm(x, axis=-1)
    return x + _A_ref(xn, A_c_kv, A_w_q, A_w_uk, A_w_uv, A_w_o) + _B_ref(xn, B_w1, B_w3, B_w2)
```

```python
import re

REG_RE = re.compile(r'\b([vas])\[(\d+):(\d+)\]|\b([vas])(\d+)\b|\b(vcc|exec|m0|scc)\b')
TRANS = ("v_exp_f32", "v_log_f32", "v_rcp_f32", "v_rsq_f32", "v_sqrt_f32", "v_sin_f32", "v_cos_f32")

def regs_of(tok):
    out = []
    for m in REG_RE.finditer(tok):
        if m.group(1):
            out.append([(m.group(1), i) for i in range(int(m.group(2)), int(m.group(3)) + 1)])
        elif m.group(4):
            out.append([(m.group(4), int(m.group(5)))])
        else:
            out.append([(m.group(6), 0)])
    return out

class Ins:
    def __init__(self, text):
        self.text = text
        t = text.split(";")[0].strip()
        parts = t.split(None, 1)
        self.op = parts[0]
        rest = parts[1] if len(parts) > 1 else ""
        ops = regs_of(rest)
        op = self.op
        self.dst, self.src = [], []
        self.cls = "other"
        self.A = self.B = self.C = []
        flat = lambda l: [r for g in l for r in g]
        if op.startswith("v_mfma"):
            self.cls = "mfma"
            self.passes = 8 if "32x32x16" in op else 4
            self.dst = ops[0]; self.A = ops[1]; self.B = ops[2]
            self.C = ops[3] if len(ops) > 3 else []
            self.src = self.A + self.B + self.C
        elif op.startswith("v_"):
            self.cls = "valu"
            if op.startswith("v_permlane"):
                self.dst = flat(ops); self.src = flat(ops)
            elif op.startswith("v_add_co") or op.startswith("v_addc_co") or op.startswith("v_sub_co"):
                self.dst = ops[0] + ops[1]; self.src = flat(ops[2:])
            else:
                self.dst = ops[0]; self.src = flat(ops[1:])
                if op.startswith("v_fmac") or "_dpp" in op or op.startswith("v_pk_fmac"):
                    self.src = self.src + ops[0]
            self.dpp = "_dpp" in op
            self.trans = any(op.startswith(x) for x in TRANS)
        elif op.startswith("buffer_") or op.startswith("global_"):
            self.cls = "vmem"
            self.lds = rest.split()[-1] == "lds" if rest else False
            if "load" in op and not self.lds:
                self.dst = ops[0]; self.src = flat(ops[1:])
            elif "atomic" in op and " sc0" in rest:
                self.dst = ops[0]; self.src = flat(ops)
            else:
                self.src = flat(ops)
            self.wide_data = []
            if "store_dwordx4" in op or "store_dwordx3" in op:
                self.wide_data = ops[0] if op.startswith("buffer_") else ops[1]
        elif op.startswith("ds_"):
            self.cls = "ds"
            if op.startswith("ds_read") or op.startswith("ds_bpermute") or op.startswith("ds_swizzle"):
                self.dst = ops[0]; self.src = flat(ops[1:])
            else:
                self.src = flat(ops)
        elif op.startswith("s_"):
            self.cls = "salu"
            nod = ("s_cmp", "s_bitcmp", "s_cbranch", "s_branch", "s_waitcnt", "s_nop", "s_barrier", "s_endpgm", "s_sleep", "s_setprio")
            if any(op.startswith(x) for x in nod):
                self.src = flat(ops)
            elif ops:
                self.dst = ops[0]; self.src = flat(ops[1:])
        self.ws = 1
        if op == "s_nop":
            self.ws = int(rest.strip(), 0) + 1
        self.target = None
        if op.startswith("s_cbranch") or op == "s_branch":
            self.target = rest.strip()

def need(p, c):
    n = 0
    pd, ps = set(p.dst), set(p.src)
    cd, cs = set(c.dst), set(c.src)
    if p.cls == "valu":
        vw = {r for r in pd if r[0] in "va" and len(r[0]) == 1}
        sw = {r for r in pd if r[0] == "s" or r[0] == "vcc"}
        if c.cls == "mfma" and vw & cs: n = max(n, 2)
        if c.cls == "vmem" and sw & cs: n = max(n, 5)
        if c.cls == "valu":
            if sw & cs:
                n = max(n, 4 if c.op.startswith("v_readlane") or c.op.startswith("v_writelane") else 2)
            if vw & cs:
                if c.op.startswith("v_readfirstlane") or c.op.startswith("v_readlane"): n = max(n, 1)
                if c.op.startswith("v_permlane") or c.dpp: n = max(n, 2)
        if p.trans and (vw & cs) and c.cls in ("valu", "vmem", "ds", "mfma"): n = max(n, 1)
    if p.cls == "mfma":
        big = 12 if p.passes == 8 else 8
        if c.cls == "mfma":
            if pd & (set(c.A) | set(c.B)): n = max(n, big)
            if pd & set(c.C):
                if not (list(p.dst) == list(c.C) and p.passes == c.passes): n = max(n, big - 2)
            elif pd & cd: n = max(n, big)
        elif c.cls in ("valu", "vmem", "ds"):
            if pd & (cs | cd): n = max(n, big)
        if c.cls == "valu" and set(p.C) & cd: n = max(n, 7 if p.passes == 8 else 3)
    if p.cls == "salu" and ("m0", 0) in pd and c.cls == "vmem" and getattr(c, "lds", False): n = max(n, 1)
    if p.cls == "vmem" and p.wide_data and set(p.wide_data) & cd:
        n = max(n, 2 if c.cls in ("valu", "mfma") else 1)
    return n

class Asm:
    def __init__(self):
        self.items = []
        self.vm = []
        self.uid = 0
    def __call__(self, text, tag=None):
        for line in text.strip().split("\n"):
            line = line.strip()
            if not line or line.startswith(";"):
                continue
            if line.endswith(":") or line.startswith("."):
                self.items.append(line)
                continue
            ins = Ins(line)
            self.items.append(ins)
            if ins.cls == "vmem" and tag != "-":
                self.vm.append(tag)
    def label(self, name):
        self.items.append(name + ":")
    def newlabel(self, base):
        self.uid += 1
        return f"L_{base}_{self.uid}"
    def vm_reset(self):
        self.vm = []
    def wait_vm(self, tag, extra=""):
        idx = max(i for i, t in enumerate(self.vm) if t == tag)
        n = len(self.vm) - 1 - idx
        self(f"s_waitcnt vmcnt({min(n, 63)}) {extra}".strip())
    def _pad_between(self, before, c):
        dist = 0
        k = 0
        for p in reversed(before):
            if dist >= 14: break
            k = max(k, need(p, c) - dist)
            dist += p.ws
        return k
    def finalize(self):
        out = []
        hist = []
        for it in self.items:
            if isinstance(it, str):
                out.append(it); continue
            k = self._pad_between(hist, it)
            if k > 0:
                nop = Ins(f"s_nop {k-1}")
                out.append(nop); hist.append(nop)
            out.append(it); hist.append(it)
            if it.op in ("s_branch", "s_endpgm"):
                hist = []
            hist = hist[-16:]
        changed = True
        while changed:
            changed = False
            lab = {it[:-1]: i for i, it in enumerate(out) if isinstance(it, str) and it.endswith(":")}
            for i, it in enumerate(out):
                if isinstance(it, Ins) and it.target is not None:
                    before = [x for x in out[max(0, i-16):i+1] if isinstance(x, Ins)]
                    after = [x for x in out[lab[it.target]:lab[it.target]+20] if isinstance(x, Ins)]
                    seq = list(before)
                    worst = 0
                    for c in after:
                        worst = max(worst, self._pad_between(seq, c))
                        seq.append(c)
                        if c.op in ("s_branch", "s_endpgm"): break
                    if worst > 0:
                        out.insert(i, Ins(f"s_nop {worst-1}"))
                        changed = True
                        break
        lines = []
        for it in out:
            if isinstance(it, str):
                lines.append(it)
            else:
                lines.append("    " + it.text)
        return "\n".join(lines) + "\n"
```

```python
import sys, struct, math
sys.path.insert(0, "gen")
from asmlib import Asm

NAME = "parallel_sum__compressed_kv_cla__glu_gated_swiglu__decode"
N_ATT, N_FFN, N_WO, N_FIN = 128, 72, 32, 18
WG_FFN, WG_WO, WG_FIN = 128, 200, 232
NWG = 250
WS_STARTED, WS_NOTICE, WS_QP, WS_QA, WS_ML, WS_CX = 0x1000, 0x4000, 0x10000, 0x50000, 0x90000, 0xA0000
WS_OUTP, WS_OP, WS_STAMP, WS_SIZE = 0x100000, 0x200000, 0x600000, 0x800000
MAXIT = 20000

def f2u(x):
    return "0x%08x" % struct.unpack("<I", struct.pack("<f", x))[0]

def vr(b, n=1):
    return f"v{b}" if n == 1 else f"v[{b}:{b+n-1}]"
def ar(b, n=1):
    return f"a{b}" if n == 1 else f"a[{b}:{b+n-1}]"

WS, XS, SA, SB, SC, SD = "s[36:39]", "s[40:43]", "s[44:47]", "s[48:51]", "s[52:55]", "s[56:59]"

DEF = dict(diag=False, nt="nt", ffn_depth=20, prefetch=True, q0a=2)

class Gen:
    def __init__(self, **kw):
        self.o = dict(DEF); self.o.update(kw)
        self.a = Asm()
        self.nst = 0

    def stamp(self, k):
        if self.o["diag"]:
            self.a(f"s_memrealtime s[{64+2*k}:{65+2*k}]")

    def stamps_out(self, n=16):
        a = self.a
        if not self.o["diag"]:
            return
        a("s_waitcnt lgkmcnt(0)")
        a("s_mov_b64 exec, -1")
        for k in range(n):
            a(f"v_writelane_b32 v2, s{64+2*k}, {k}")
        a("s_lshl_b32 s6, s2, 2\ns_add_u32 s6, s6, s3\ns_lshl_b32 s6, s6, 6")
        a(f"s_add_u32 s6, s6, {WS_STAMP}")
        a("v_lshlrev_b32 v3, 2, v1")
        a("s_mov_b64 exec, 0xffff")
        a(f"buffer_store_dword v2, v3, {WS}, s6 offen")

    def srd(self, base, koff, size):
        a = self.a
        a(f"s_load_dwordx2 s[{base}:{base+1}], s[0:1], {koff}")
        a(f"s_mov_b32 s{base+2}, {size}")
        a(f"s_mov_b32 s{base+3}, 0x00020000")

    def allreduce(self, regs, tmpregs, op, to64):
        a = self.a
        for sh in (8, 4, 2, 1):
            for r in regs:
                a(f"{op}_dpp v{r}, v{r}, v{r} row_ror:{sh} row_mask:0xf bank_mask:0xf")
        for sw in (["v_permlane16_swap_b32"] + (["v_permlane32_swap_b32"] if to64 else [])):
            for r, t in zip(regs, tmpregs):
                a(f"v_mov_b32 v{t}, v{r}")
            for r, t in zip(regs, tmpregs):
                a(f"{sw} v{r}, v{t}")
            for r, t in zip(regs, tmpregs):
                a(f"{op} v{r}, v{r}, v{t}")

    def get_tag(self, v):
        a = self.a
        a(f"v_readfirstlane_b32 s4, v{v}")
        a(f"v_readfirstlane_b32 s5, v{v+1}")
        a("s_add_u32 s4, s4, 1\ns_addc_u32 s5, s5, 0")

    def load_epoch_x(self, ve, vx):
        a = self.a
        a(f"buffer_load_dwordx2 {vr(ve,2)}, off, {WS}, 0 sc1", "ep")
        a("s_mul_i32 s6, s3, 1152")
        a("v_lshlrev_b32 v2, 4, v1")
        a("v_lshlrev_b32 v3, 1, v1")
        a(f"buffer_load_dwordx4 {vr(vx,4)}, v2, {XS}, s6 offen", "x")
        a(f"buffer_load_ushort {vr(vx+4)}, v3, {XS}, s6 offen offset:1024", "x")

    def layernorm(self, vx, vt, ldsbase):
        a = self.a
        f = [vt + k for k in range(9)]
        d = [vt + 12 + k for k in range(9)]
        s1, s2, t1, t2, m, r = vt + 22, vt + 23, vt + 24, vt + 25, vt + 26, vt + 27
        a("s_mov_b32 s7, 0xffff0000")
        for k in range(4):
            a(f"v_lshlrev_b32 v{f[2*k]}, 16, v{vx+k}")
            a(f"v_and_b32 v{f[2*k+1]}, s7, v{vx+k}")
        a(f"v_lshlrev_b32 v{f[8]}, 16, v{vx+4}")
        a(f"v_readfirstlane_b32 s6, v{f[0]}")
        for k in range(9):
            a(f"v_subrev_f32 v{d[k]}, s6, v{f[k]}")
        a(f"v_add_f32 v{s1}, v{d[0]}, v{d[1]}")
        a(f"v_mul_f32 v{s2}, v{d[0]}, v{d[0]}")
        a(f"v_fmac_f32 v{s2}, v{d[1]}, v{d[1]}")
        for k in range(2, 9):
            a(f"v_add_f32 v{s1}, v{s1}, v{d[k]}")
            a(f"v_fmac_f32 v{s2}, v{d[k]}, v{d[k]}")
        self.allreduce([s1, s2], [t1, t2], "v_add_f32", True)
        inv = f2u(1.0 / 576.0)
        a(f"v_mul_f32 v{s1}, {inv}, v{s1}")
        a(f"v_mul_f32 v{s2}, {inv}, v{s2}")
        a(f"v_fma_f32 v{s2}, -v{s1}, v{s1}, v{s2}")
        a(f"v_add_f32 v{s1}, s6, v{s1}")
        a(f"v_max_f32 v{s2}, 0, v{s2}")
        a(f"v_cvt_pk_bf16_f32 v{t1}, v{s1}, v{s2}")
        a(f"v_lshlrev_b32 v{m}, 16, v{t1}")
        a(f"v_and_b32 v{t2}, s7, v{t1}")
        a(f"v_add_f32 v{t2}, {f2u(1e-5)}, v{t2}")
        a(f"v_cvt_pk_bf16_f32 v{t2}, v{t2}, v{t2}")
        a(f"v_and_b32 v{t2}, s7, v{t2}")
        a(f"v_sqrt_f32 v{t2}, v{t2}")
        for k in range(9):
            a(f"v_sub_f32 v{f[k]}, v{f[k]}, v{m}")
        a(f"v_cvt_pk_bf16_f32 v{t2}, v{t2}, v{t2}")
        a(f"v_and_b32 v{t2}, s7, v{t2}")
        a(f"v_rcp_f32 v{r}, v{t2}")
        for k in range(4):
            a(f"v_cvt_pk_bf16_f32 v{f[2*k+1]}, v{f[2*k]}, v{f[2*k+1]}")
        a(f"v_cvt_pk_bf16_f32 v{f[8]}, v{f[8]}, v{f[8]}")
        for k in range(4):
            a(f"v_lshlrev_b32 v{f[2*k]}, 16, v{f[2*k+1]}")
            a(f"v_and_b32 v{f[2*k+1]}, s7, v{f[2*k+1]}")
        a(f"v_and_b32 v{f[8]}, s7, v{f[8]}")
        for k in range(9):
            a(f"v_mul_f32 v{f[k]}, v{f[k]}, v{r}")
        for k in range(9):
            a(f"v_cvt_pk_bf16_f32 v{d[k]}, v{f[k]}, v{f[k]}")
        a("s_mul_i32 s6, s3, 2304")
        a(f"s_add_u32 s6, s6, {ldsbase}")
        a(f"v_lshl_add_u32 v{t1}, v1, 5, s6")
        a(f"v_lshl_add_u32 v{t2}, v1, 2, s6")
        a(f"ds_write_b128 v{t1}, {vr(d[0],4)}")
        a(f"ds_write_b128 v{t1}, {vr(d[4],4)} offset:16")
        a(f"ds_write_b32 v{t2}, v{d[8]} offset:2048")

    def masks(self, vm):
        a = self.a
        a("v_and_b32 v2, 1, v1")
        a("v_lshlrev_b32 v2, 4, v2")
        a("v_mov_b32 v3, 0xffff")
        a("v_lshlrev_b32 v2, v2, v3")
        a("v_bfe_u32 v3, v1, 1, 2")
        for r in range(4):
            a(f"v_cmp_eq_u32 vcc, {r}, v3")
            a(f"v_cndmask_b32 v{vm+r}, 0, v2, vcc")

    def poll_group(self, name, n, issue, check, action, first_issued=None):
        a = self.a
        allm = (1 << n) - 1
        Lp, Ld = a.newlabel(name + "_poll"), a.newlabel(name + "_done")
        a("s_mov_b32 s62, 0")
        a("s_mov_b32 s63, 0")
        if first_issued is None:
            for j in range(n):
                issue(j, f"{name}{j}")
            first_issued = [f"{name}{j}" for j in range(n)]
        for j in range(n):
            a.wait_vm(first_issued[j])
            check(j)
            action(j)
            a("s_cmp_eq_u64 vcc, 0")
            if n == 1:
                a(f"s_cbranch_scc1 {Ld}")
            else:
                a(f"s_cselect_b32 s6, {1 << j}, 0")
                a("s_or_b32 s62, s62, s6")
        if n > 1:
            a(f"s_cmp_eq_u32 s62, {allm}")
            a(f"s_cbranch_scc1 {Ld}")
        a.label(Lp)
        for j in range(n):
            if n > 1:
                Ls = a.newlabel(name + "_i")
                a(f"s_bitcmp1_b32 s62, {j}")
                a(f"s_cbranch_scc1 {Ls}")
            issue(j, "-")
            if n > 1:
                a.label(Ls)
        a("s_waitcnt vmcnt(0)")
        for j in range(n):
            if n > 1:
                Ls = a.newlabel(name + "_c")
                a(f"s_bitcmp1_b32 s62, {j}")
                a(f"s_cbranch_scc1 {Ls}")
            check(j)
            action(j)
            a("s_cmp_eq_u64 vcc, 0")
            if n == 1:
                a(f"s_cbranch_scc1 {Ld}")
            else:
                a(f"s_cselect_b32 s6, {1 << j}, 0")
                a("s_or_b32 s62, s62, s6")
                a.label(Ls)
        if n > 1:
            a(f"s_cmp_eq_u32 s62, {allm}")
            a(f"s_cbranch_scc1 {Ld}")
        a("s_add_u32 s63, s63, 1")
        a(f"s_cmp_lt_u32 s63, {MAXIT}")
        a(f"s_cbranch_scc1 {Lp}")
        a.label(Ld)

    def stage_partials(self, name, sbase, vg, vt, ldsbase, vA):
        a = self.a
        def issue(j, tag):
            a(f"buffer_load_dwordx4 {vr(vg+4*j,4)}, v{vt}, {WS}, s{sbase} offen offset:{1024*j} sc1", tag)
        def check(j):
            a(f"v_cmp_ne_u64 vcc, s[4:5], {vr(vg+4*j+2,2)}")
        def action(j):
            a(f"ds_write_b64 v{vt+1}, {vr(vg+4*j,2)} offset:{j*8*272}")
        self.poll_group(name, 2, issue, check, action)
        a("s_waitcnt lgkmcnt(0)")
        a("s_barrier")
        for ks in range(4):
            a(f"ds_read_b128 {vr(vA+4*ks,4)}, v{vt+2} offset:{64*ks}")

    def stage_addr(self, vt, ldsbase):
        a = self.a
        a("s_lshl_b32 s6, s3, 11")
        a(f"v_lshl_add_u32 v{vt}, v1, 4, s6")
        a("v_lshrrev_b32 v2, 5, v1")
        a("v_mul_u32_u24 v2, 1088, v2")
        a("v_and_b32 v3, 31, v1")
        a("v_lshl_add_u32 v2, v3, 3, v2")
        a("s_mul_i32 s6, s3, 272")
        a(f"s_add_u32 s6, s6, {ldsbase}")
        a(f"v_add_u32 v{vt+1}, s6, v2")
        a("v_and_b32 v2, 15, v1")
        a("v_mul_u32_u24 v2, 272, v2")
        a("v_lshrrev_b32 v3, 4, v1")
        a("v_lshl_add_u32 v2, v3, 4, v2")
        a(f"v_add_u32 v{vt+2}, {ldsbase}, v2")

    def w_dma_setup(self, vo):
        a = self.a
        a("v_lshrrev_b32 v2, 3, v1")
        a("v_bfe_u32 v3, v1, 1, 2")
        a(f"v_lshrrev_b32 v{vo}, 4, v1")
        a(f"v_xor_b32 v3, v3, v{vo}")
        a("s_and_b32 s6, s3, 1\ns_lshl_b32 s6, s6, 1")
        a("v_xor_b32 v3, s6, v3")
        a("v_mul_u32_u24 v2, 1152, v2")
        a("v_lshl_add_u32 v2, v3, 5, v2")
        a("v_and_b32 v3, 1, v1")
        a(f"v_lshl_add_u32 v{vo}, v3, 4, v2")

    def w_dma_issue(self, vo, srd, sg, m, tag, cbs=range(9)):
        a = self.a
        nt = self.o["nt"]
        for cb in cbs:
            a(f"s_add_u32 m0, s{sg+1}, {m*36864 + cb*1024}")
            a(f"s_add_u32 s6, s{sg}, {m*36864 + cb*128}")
            a(f"buffer_load_dwordx4 v{vo}, {srd}, s6 offen {nt} lds", tag)

    def w_tr_addr(self, vb):
        a = self.a
        a("v_lshrrev_b32 v2, 4, v1")
        a(f"v_mul_u32_u24 v{vb}, 9216, v2")
        a("v_bfe_u32 v3, v1, 2, 2")
        a(f"v_lshl_add_u32 v{vb}, v3, 7, v{vb}")
        a("v_lshrrev_b32 v3, 1, v3")
        a("v_and_b32 v2, 1, v2")
        a("v_lshlrev_b32 v2, 1, v2")
        a("v_xor_b32 v3, v3, v2")
        a("v_xor_b32 v3, s3, v3")
        a(f"v_lshl_add_u32 v{vb}, v3, 5, v{vb}")
        a("v_and_b32 v3, 3, v1")
        a(f"v_lshl_add_u32 v{vb}, v3, 3, v{vb}")
        a(f"v_xor_b32 v{vb+1}, 64, v{vb}")
        a(f"v_add_u32 v{vb+1}, 512, v{vb+1}")

    def w_tr_reads(self, vb, nks):
        a = self.a
        for ks in range(nks):
            if ks == 2:
                a(f"v_add_u32 v{vb}, {2*36864}, v{vb}")
                a(f"v_add_u32 v{vb+1}, {2*36864}, v{vb+1}")
            for cb in range(9):
                for hf in range(2):
                    a(f"ds_read_b64_tr_b16 {ar((ks*9+cb)*4+2*hf,2)}, v{vb+hf} offset:{(ks%2)*36864 + cb*1024}")

    def outp_addr(self, va, sp):
        a = self.a
        a(f"v_lshlrev_b32 v{va}, 4, v1")
        a(f"v_lshlrev_b32 v{va+1}, 2, v1")
        a(f"s_mul_i32 s6, s3, {104*64}")
        a(f"s_lshl_b32 s{sp+1}, s{sp}, 6")
        a(f"s_add_u32 s{sp+1}, s{sp+1}, s6")
        a(f"s_add_u32 s{sp+1}, s{sp+1}, {WS_NOTICE}")
        a(f"s_mul_i32 s{sp}, s{sp}, 9216")
        a("s_mul_i32 s6, s3, 2304")
        a(f"s_add_u32 s{sp}, s{sp}, s6")
        a(f"s_add_u32 s{sp}, s{sp}, {WS_OUTP}")

    def outp_store(self, va, sp, q0, q1, q2, tag):
        a = self.a
        a(f"buffer_store_dwordx4 {vr(q0,4)}, v{va}, {WS}, s{sp} offen sc1", tag)
        a(f"buffer_store_dwordx4 {vr(q1,4)}, v{va}, {WS}, s{sp} offen offset:1024 sc1", tag)
        a(f"buffer_store_dword v{q2}, v{va+1}, {WS}, s{sp} offen offset:2048 sc1", tag)

    def outp_clear(self, va, sp, vq):
        a = self.a
        for k in range(4):
            a(f"v_mov_b32 v{vq+k}, -1")
        self.outp_store(va, sp, vq, vq, vq, "clr")

    def notice(self, sp, vq):
        a = self.a
        a(f"v_mov_b32 v{vq}, s4\nv_mov_b32 v{vq+1}, s5\nv_mov_b32 v{vq+2}, s4\nv_mov_b32 v{vq+3}, s5")
        a("s_mov_b64 exec, 1")
        a(f"buffer_store_dwordx4 {vr(vq,4)}, off, {WS}, s{sp+1} sc1", "note")
        a("s_mov_b64 exec, -1")

    def dense_out(self, vA, nks, vacc, va, sp):
        a = self.a
        for ks in range(nks):
            for cb in range(9):
                c = "0" if ks == 0 else vr(vacc + 4*cb, 4)
                a(f"v_mfma_f32_16x16x32_bf16 {vr(vacc+4*cb,4)}, {vr(vA+4*ks,4)}, {ar((ks*9+cb)*4,4)}, {c}")
        q = vacc + 36
        for grp in ((0, 1, 2, 3), (4, 5, 6, 7), (8,)):
            for cb in grp:
                a(f"v_add_f32 v{vacc+4*cb}, v{vacc+4*cb}, v{vacc+4*cb+1}")
                a(f"v_add_f32 v{vacc+4*cb+2}, v{vacc+4*cb+2}, v{vacc+4*cb+3}")
            for cb in grp:
                a(f"v_add_f32 v{q+cb}, v{vacc+4*cb}, v{vacc+4*cb+2}")
            if grp[0] == 0:
                a(f"buffer_store_dwordx4 {vr(q,4)}, v{va}, {WS}, s{sp} offen sc1")
            elif grp[0] == 4:
                a(f"buffer_store_dwordx4 {vr(q+4,4)}, v{va}, {WS}, s{sp} offen offset:1024 sc1")
            else:
                a(f"buffer_store_dword v{q+8}, v{va+1}, {WS}, s{sp} offen offset:2048 sc1")

    def preamble(self):
        a = self.a
        self.stamp(0)
        a(f"s_cmp_ge_u32 s2, {NWG}")
        a("s_cbranch_scc1 L_end")
        self.srd(36, 96, WS_SIZE)
        self.srd(40, 0, 4608)
        a("v_and_b32 v1, 63, v0")
        a("v_lshrrev_b32 v2, 6, v0")
        if self.o["prefetch"]:
            a("s_getpc_b64 s[60:61]")
            a.label("L_pc")
            a("v_lshlrev_b32 v3, 7, v0")
            a("v_min_u32 v3, L_codeend-L_pc-4, v3")
            a("v_readfirstlane_b32 s3, v2")
            a("global_load_dword v255, v3, s[60:61]", "pf")
        else:
            a("v_readfirstlane_b32 s3, v2")
        a(f"s_cmp_ge_u32 s2, {WG_FFN}")
        a("s_cbranch_scc1 L_notatt")

    def att(self):
        a, o = self.a, self.o
        nt = o["nt"]
        STG = 131072
        XN, RED = STG, STG + 10240
        MX, LX, PX, AL, LAT = 32768, 32768 + 512, 32768 + 1024, 32768 + 1024 + 8192, 32768 + 1024 + 8192 + 512
        self.srd(44, 16, 576 * 8192)
        self.srd(48, 8, 4 * 4096 * 1024)
        self.srd(52, 32, 512 * 8192)
        a("s_and_b32 s8, s2, 31\ns_lshr_b32 s9, s2, 5")
        a("s_bfe_u32 s10, s2, 0x20001")
        a("s_lshr_b32 s11, s2, 3\ns_lshl_b32 s11, s11, 1\ns_and_b32 s6, s2, 1\ns_or_b32 s11, s11, s6")
        VM, VG, VL = 10, 14, 15
        a(f"v_lshrrev_b32 v{VG}, 4, v1\nv_and_b32 v{VL}, 15, v1")
        a("s_lshl_b32 s6, s3, 2")
        a(f"v_add_u32 v5, s6, v{VG}")
        a(f"v_mul_u32_u24 v4, {9*8192}, v5")
        a(f"v_lshl_add_u32 v4, v{VL}, 4, v4")
        a(f"s_mul_i32 s12, s9, {144*8192}\ns_lshl_b32 s6, s8, 8\ns_add_u32 s12, s12, s6")
        a(f"v_lshl_or_b32 v6, v{VG}, 2, s3")
        a(f"v_xor_b32 v6, v6, v{VL}")
        a("v_lshlrev_b32 v6, 4, v6")
        a(f"v_lshl_add_u32 v6, v{VG}, 10, v6")
        a("s_lshl_b32 s6, s3, 12")
        a("v_add_u32 v6, s6, v6")
        a("s_lshl_b32 s13, s10, 22\ns_lshl_b32 s6, s11, 17\ns_add_u32 s13, s13, s6")
        a("s_lshl_b32 s14, s3, 10")
        VE, VX, VW, VXN, VA, VACC, VT = 8, 152, 16, 52, 72, 144, 160
        a("s_waitcnt lgkmcnt(0)")
        self.load_epoch_x(VE, VX)
        for t in range(9):
            if t:
                a("s_add_u32 s12, s12, 8192")
            a(f"buffer_load_dwordx4 {vr(VW+4*t,4)}, v4, {SA}, s12 offen {nt}", f"wq{t}")
        def ckv(cq, ms):
            for m in ms:
                a(f"s_add_u32 m0, s14, {cq*32768 + m*4096}")
                a(f"s_add_u32 s6, s13, {m*16384 + cq*256}")
                a(f"buffer_load_dwordx4 v6, {SB}, s6 offen {nt} lds", f"q{cq}")
        ckv(0, range(o["q0a"]))
        self.masks(VM)
        a("v_bfe_u32 v2, v1, 3, 1")
        a("v_mul_u32_u24 v2, 2304, v2")
        a("v_mul_u32_u24 v3, 36, v5")
        a("v_add_u32 v2, v2, v3")
        a(f"s_mul_i32 s6, s9, 576\ns_add_u32 s6, s6, {XN}")
        a("v_add_u32 v7, s6, v2")
        a("v_add_u32 v5, 4608, v7")
        a.wait_vm("x")
        self.stamp(1)
        self.get_tag(VE)
        self.layernorm(VX, VT, XN)
        a("s_waitcnt lgkmcnt(0)")
        a("s_barrier")
        for ch, ad in ((0, 7), (1, 5)):
            for k in range(4):
                a(f"ds_read2_b32 {vr(VXN+10*ch+2*k,2)}, v{ad} offset0:{2*k} offset1:{2*k+1}")
            a(f"ds_read_b32 v{VXN+10*ch+8}, v{ad} offset:32")
        ckv(0, range(o["q0a"], 8))
        a("s_waitcnt lgkmcnt(0)")
        for t in range(9):
            for ch in range(2):
                for r in range(4):
                    a(f"v_and_b32 v{VA+(2*t+ch)*4+r}, v{VXN+10*ch+t}, v{VM+r}")
        a(f"s_lshl_b32 s6, s3, 11\ns_add_u32 s6, s6, {RED}")
        a("v_lshl_add_u32 v2, v1, 4, s6")
        a(f"s_lshl_b32 s6, s3, 10\ns_add_u32 s6, s6, {RED}")
        a("v_lshl_add_u32 v3, v1, 4, s6")
        a("s_lshl_b32 s15, s8, 2\ns_add_u32 s15, s15, s9\ns_lshl_b32 s15, s15, 11\ns_add_u32 s15, s15, s14")
        a(f"s_add_u32 s15, s15, {WS_QP}")
        a("v_lshrrev_b32 v5, 5, v1")
        a("v_lshlrev_b32 v5, 9, v5")
        a(f"v_lshl_add_u32 v5, v{VL}, 5, v5")
        a(f"v_and_b32 v7, 1, v{VG}")
        a("v_lshl_add_u32 v5, v7, 4, v5")
        for t in range(9):
            a.wait_vm(f"wq{t}")
            for ch in range(2):
                c = "0" if t == 0 else vr(VACC + 4*ch, 4)
                a(f"v_mfma_f32_16x16x32_bf16 {vr(VACC+4*ch,4)}, {vr(VA+(2*t+ch)*4,4)}, {vr(VW+4*t,4)}, {c}")
        self.stamp(2)
        a(f"ds_write_b128 v2, {vr(VACC,4)}")
        a(f"ds_write_b128 v2, {vr(VACC+4,4)} offset:1024")
        a("s_waitcnt lgkmcnt(0)")
        a("s_barrier")
        a("s_cmp_ge_u32 s3, 2")
        a("s_cbranch_scc1 L_att_noqp")
        for k in range(4):
            a(f"ds_read_b128 {vr(16+4*k,4)}, v3 offset:{2048*k}")
        a("v_mov_b32 v34, s4\nv_mov_b32 v35, s5")
        a("s_waitcnt lgkmcnt(0)")
        for r in range(4):
            a(f"v_add_f32 v{16+r}, v{16+r}, v{20+r}")
            a(f"v_add_f32 v{24+r}, v{24+r}, v{28+r}")
        for r in range(4):
            a(f"v_add_f32 v{16+r}, v{16+r}, v{24+r}")
        a("v_cvt_pk_bf16_f32 v32, v16, v17")
        a("v_cvt_pk_bf16_f32 v33, v18, v19")
        a(f"buffer_store_dwordx4 v[32:35], v5, {WS}, s15 offen sc1", "-")
        a.label("L_att_noqp")
        self.stamp(3)
        ckv(1, range(8))
        ckv(2, range(8))
        VQK, VTR, VQB, VSG, VOP = 176, 184, 186, 194, 202
        a("v_and_b32 v2, 3, v1")
        a("v_lshlrev_b32 v2, 2, v2")
        a("v_bfe_u32 v3, v1, 2, 2")
        a("v_or_b32 v2, v2, v3")
        a("v_lshrrev_b32 v3, 5, v1")
        a("v_xor_b32 v2, v2, v3")
        a("v_lshlrev_b32 v2, 4, v2")
        a("v_and_b32 v3, 31, v1")
        a("v_lshl_add_u32 v2, v3, 8, v2")
        a("s_lshl_b32 s6, s3, 13")
        a(f"v_add_u32 v{VQK}, s6, v2")
        for k in range(1, 8):
            a(f"v_xor_b32 v{VQK+k}, {32*k}, v{VQK}")
        a("v_bfe_u32 v2, v1, 2, 2")
        a("v_lshrrev_b32 v3, 5, v1")
        a("v_lshl_add_u32 v7, v3, 2, v2")
        a("v_lshl_or_b32 v2, v2, 2, v3")
        a("v_bfe_u32 v3, v1, 4, 1")
        a("v_lshlrev_b32 v3, 1, v3")
        a("v_bfe_u32 v5, v1, 1, 1")
        a("v_or_b32 v3, v3, v5")
        a("s_lshl_b32 s6, s3, 2")
        a("v_or_b32 v3, s6, v3")
        a("v_xor_b32 v2, v2, v3")
        a("v_lshlrev_b32 v2, 4, v2")
        a("v_lshl_add_u32 v2, v7, 8, v2")
        a("v_and_b32 v3, 1, v1")
        a(f"v_lshl_add_u32 v{VTR}, v3, 3, v2")
        a(f"v_xor_b32 v{VTR+1}, 32, v{VTR}")
        a("v_lshrrev_b32 v3, 5, v1")
        a(f"v_xor_b32 v2, v3, v{VL}")
        a("v_lshlrev_b32 v2, 4, v2")
        a("v_and_b32 v3, 31, v1")
        a("v_lshl_add_u32 v2, v3, 10, v2")
        a(f"v_add_u32 v{VQB}, {STG}, v2")
        for k in range(1, 8):
            a(f"v_xor_b32 v{VQB+k}, {32*k}, v{VQB}")
        a("s_and_b32 s6, s3, 1\ns_lshl_b32 s6, s6, 7")
        a("v_lshlrev_b32 v2, 3, v1")
        a("v_xor_b32 v2, s6, v2")
        a(f"s_lshl_b32 s6, s3, 13\ns_add_u32 s6, s6, {STG}")
        a(f"v_add_u32 v{VSG}, s6, v2")
        for k in range(1, 8):
            a(f"v_xor_b32 v{VSG+k}, {16*k}, v{VSG}")
        a("v_lshrrev_b32 v2, 5, v1")
        a("v_lshlrev_b32 v2, 2, v2")
        a("v_bfe_u32 v3, v1, 4, 1")
        a("v_or_b32 v2, v2, v3")
        a("v_lshlrev_b32 v2, 17, v2")
        a(f"v_lshl_add_u32 v{VOP}, v{VL}, 4, v2")
        a("s_lshl_b32 s16, s3, 15\ns_lshl_b32 s6, s10, 13\ns_add_u32 s16, s16, s6\ns_lshl_b32 s6, s11, 8\ns_add_u32 s16, s16, s6")
        a(f"s_add_u32 s16, s16, {WS_OP}")
        a("s_lshl_b32 s17, s10, 16\ns_lshl_b32 s6, s3, 14\ns_add_u32 s17, s17, s6")
        a(f"s_add_u32 s17, s17, {WS_QA}")
        VL16 = 203
        a(f"v_lshlrev_b32 v{VL16}, 4, v1")
        VUV = 204
        a("s_and_b32 s6, s3, 1\ns_lshl_b32 s7, s6, 2")
        a(f"v_or_b32 v2, s7, v{VG}")
        a("v_bfe_u32 v3, v1, 1, 3")
        a("v_xor_b32 v2, v2, v3")
        a("v_lshlrev_b32 v2, 5, v2")
        a(f"v_lshl_add_u32 v2, v{VG}, 20, v2")
        a("v_and_b32 v3, 1, v1")
        a(f"v_lshl_add_u32 v{VUV}, v3, 4, v2")
        a("s_lshr_b32 s7, s3, 1")
        a("s_lshl_b32 s19, s6, 1\ns_add_u32 s19, s19, s7\ns_lshl_b32 s19, s19, 10")
        a("s_lshl_b32 s18, s7, 4\ns_add_u32 s18, s18, s6\ns_lshl_b32 s7, s9, 5\ns_add_u32 s18, s18, s7\ns_lshl_b32 s18, s18, 13")
        a("s_lshl_b32 s6, s8, 8\ns_add_u32 s18, s18, s6")

        def rdq(cq):
            a.wait_vm(f"q{cq}", "lgkmcnt(0)")
            a("s_barrier")
            if cq == 2:
                for k in range(8):
                    a(f"v_add_u32 v{VQK+k}, 0x10000, v{VQK+k}")
                a(f"v_add_u32 v{VTR}, 0x10000, v{VTR}\nv_add_u32 v{VTR+1}, 0x10000, v{VTR+1}")
            for k in range(8):
                a(f"ds_read_b128 {ar((cq*8+k)*4,4)}, v{VQK+k} offset:{(cq%2)*32768}")
            for u in range(8):
                for hf in range(2):
                    a(f"ds_read_b64_tr_b16 {ar(128+(cq*8+u)*4+2*hf,2)}, v{VTR+hf} offset:{(cq%2)*32768 + u*4096 + hf*2048}")
        def op_store(u, q, tag):
            a(f"s_add_u32 s6, s16, {(8*(u//2) + 2*(u%2))*131072}")
            a(f"buffer_store_dwordx4 {vr(q,4)}, v{VOP}, {WS}, s6 offen sc1", tag)
        rdq(0)
        ckv(3, range(8))
        rdq(1)
        for k in range(4):
            a(f"v_mov_b32 v{208+k}, -1")
        for u in range(8):
            op_store(u, 208, "clr")
        VQG = 16
        def qa_issue(j, tag):
            if j % 4 == 0 or tag == "-":
                a(f"s_add_u32 s6, s17, {(j//4)*4096}")
            a(f"buffer_load_dwordx4 {vr(VQG+4*j,4)}, v{VL16}, {WS}, s6 offen offset:{(j%4)*1024} sc1", tag)
        for j in range(16):
            qa_issue(j, f"qa{j}")
        rdq(2)
        for m in range(8):
            a(f"s_add_u32 m0, s19, {m*4096}")
            a(f"s_add_u32 s6, s18, {m*16384}")
            a(f"buffer_load_dwordx4 v{VUV}, {SC}, s6 offen {nt} lds", "uv")
        rdq(3)
        self.stamp(4)
        def qa_check(j):
            a(f"v_cmp_ne_u64 vcc, s[4:5], {vr(VQG+4*j+2,2)}")
        def qa_act(j):
            a(f"ds_write_b64 v{VSG+j//2}, {vr(VQG+4*j,2)} offset:{(j//2)*1024 + (j%2)*512}")
        self.poll_group("qa", 16, qa_issue, qa_check, qa_act, [f"qa{j}" for j in range(16)])
        a("s_waitcnt lgkmcnt(0)")
        a("s_barrier")
        self.stamp(5)
        VB, VS = 16, 144
        for ks in range(32):
            a(f"ds_read_b128 {vr(VB+4*ks,4)}, v{VQB+ks%8} offset:{(ks//8)*256}")
            if ks >= 8:
                k2 = ks - 8
                a("s_waitcnt lgkmcnt(8)")
                c = "0" if k2 == 0 else vr(VS, 16)
                a(f"v_mfma_f32_32x32x16_bf16 {vr(VS,16)}, {ar(4*k2,4)}, {vr(VB+4*k2,4)}, {c}")
        for k2 in range(24, 32):
            a(f"s_waitcnt lgkmcnt({31-k2})")
            a(f"v_mfma_f32_32x32x16_bf16 {vr(VS,16)}, {ar(4*k2,4)}, {vr(VB+4*k2,4)}, {vr(VS,16)}")
        a("v_and_b32 v5, 31, v1")
        a("v_lshlrev_b32 v5, 4, v5")
        a(f"v_add_u32 v5, {MX}, v5")
        a("s_lshl_b32 s6, s3, 2")
        a("v_add_u32 v4, s6, v5")
        a(f"v_add_u32 v7, {PX}, v{VL16}")
        a("s_lshl_b32 s6, s3, 11")
        a("v_add_u32 v6, s6, v7")
        a("s_lshl_b32 s20, s10, 5\ns_add_u32 s20, s20, s11\ns_lshl_b32 s20, s20, 4")
        a(f"s_add_u32 s20, s20, {WS_ML}")
        a("v_lshlrev_b32 v9, 11, v1")
        a(f"v_max3_f32 v2, v{VS}, v{VS+1}, v{VS+2}")
        a(f"v_max3_f32 v3, v{VS+3}, v{VS+4}, v{VS+5}")
        for k in range(6, 14, 4):
            a(f"v_max3_f32 v2, v2, v{VS+k}, v{VS+k+1}")
            a(f"v_max3_f32 v3, v3, v{VS+k+2}, v{VS+k+3}")
        a(f"v_max3_f32 v2, v2, v{VS+14}, v{VS+15}")
        a("v_max_f32 v2, v2, v3")
        a("v_mov_b32 v3, v2")
        a("v_permlane32_swap_b32 v2, v3")
        a("v_max_f32 v2, v2, v3")
        a("ds_write_b32 v4, v2")
        a("s_waitcnt lgkmcnt(0)")
        a("s_barrier")
        a("ds_read_b128 v[16:19], v5")
        a("s_waitcnt lgkmcnt(0)")
        VMX = 160
        a("v_max3_f32 v2, v16, v17, v18")
        a(f"v_max_f32 v{VMX}, v2, v19")
        for k in range(16):
            a(f"v_sub_f32 v{VS+k}, v{VS+k}, v{VMX}")
        for k in range(16):
            a(f"v_exp_f32 v{VS+k}, v{VS+k}")
        for k in range(8):
            a(f"v_cvt_pk_bf16_f32 v{16+k}, v{VS+2*k}, v{VS+2*k+1}")
        a("ds_write_b128 v6, v[16:19]")
        a("ds_write_b128 v6, v[20:23] offset:1024")
        for k in range(4):
            a(f"v_pk_add_f32 {vr(VS+2*k,2)}, {vr(VS+2*k,2)}, {vr(VS+8+2*k,2)}")
        for k in range(2):
            a(f"v_pk_add_f32 {vr(VS+2*k,2)}, {vr(VS+2*k,2)}, {vr(VS+4+2*k,2)}")
        a(f"v_pk_add_f32 {vr(VS,2)}, {vr(VS,2)}, {vr(VS+2,2)}")
        a(f"v_add_f32 v2, v{VS}, v{VS+1}")
        a("v_mov_b32 v3, v2")
        a("v_permlane32_swap_b32 v2, v3")
        a("v_add_f32 v2, v2, v3")
        a("ds_write_b32 v4, v2 offset:512")
        a("s_waitcnt lgkmcnt(0)")
        a("s_barrier")
        self.stamp(6)
        VP, VO = 16, 48
        for u in range(8):
            a(f"ds_read_b128 {vr(VP+4*u,4)}, v7 offset:{1024*u}")
        a("ds_read_b128 v[164:167], v5 offset:512")
        def pv(cq, u):
            c = "0" if u == 0 else vr(VO + 16*cq, 16)
            a(f"v_mfma_f32_32x32x16_bf16 {vr(VO+16*cq,16)}, {vr(VP+4*u,4)}, {ar(128+(cq*8+u)*4,4)}, {c}")
        for u in range(8):
            a(f"s_waitcnt lgkmcnt({8-u})")
            pv(0, u); pv(1, u)
            if u == 1:
                a("s_waitcnt lgkmcnt(0)")
                a("v_add_f32 v164, v164, v165")
                a("v_add_f32 v166, v166, v167")
                a(f"v_add_f32 v{VMX+1}, v164, v166")
                a(f"v_mov_b32 v{VMX+2}, s4\nv_mov_b32 v{VMX+3}, s5")
                a("s_cmp_lg_u32 s3, 0")
                a("s_cbranch_scc1 L_att_noml")
                a("s_mov_b64 exec, 0xffffffff")
                a(f"buffer_store_dwordx4 {vr(VMX,4)}, v9, {WS}, s20 offen sc1", "-")
                a("s_mov_b64 exec, -1")
                a.label("L_att_noml")
        VQ = 112
        for u in range(8):
            pv(2, u); pv(3, u)
            if u >= 2:
                lo, hi = (u-2)*16//6, (u-1)*16//6
                for r in range(lo, hi):
                    a(f"v_cvt_pk_bf16_f32 v{VQ+4*(r//2)+2*(r%2)}, v{VO+r}, v{VO+16+r}")
        for u in range(8):
            for r in (2*u, 2*u+1):
                a(f"v_cvt_pk_bf16_f32 v{VQ+4*(r//2)+2*(r%2)+1}, v{VO+32+r}, v{VO+48+r}")
            a(f"v_permlane16_swap_b32 v{VQ+4*u}, v{VQ+4*u+2}")
            a(f"v_permlane16_swap_b32 v{VQ+4*u+1}, v{VQ+4*u+3}")
            op_store(u, VQ + 4*u, "o")
        self.stamp(7)
        a.wait_vm("uv")
        a("s_barrier")
        a("s_lshl_b32 s21, s8, 2\ns_add_u32 s21, s21, s3\ns_lshl_b32 s21, s21, 9")
        a(f"s_add_u32 s21, s21, {WS_ML}")
        a("v_and_b32 v2, 31, v1")
        a("v_lshlrev_b32 v4, 4, v2")
        def ml_issue(j, tag):
            a(f"buffer_load_dwordx4 v[16:19], v4, {WS}, s21 offen sc1", tag)
        ml_issue(0, "ml0")
        a("v_bfe_u32 v3, v1, 2, 2")
        a(f"v_lshl_add_u32 v5, v{VG}, 3, v3")
        a(f"v_and_b32 v6, 1, v{VG}")
        a("v_lshl_or_b32 v3, v6, 2, v3")
        a("s_lshl_b32 s6, s3, 1")
        a("v_xor_b32 v3, s6, v3")
        a("v_lshlrev_b32 v3, 5, v3")
        a("v_lshl_add_u32 v5, v5, 8, v3")
        a("v_and_b32 v3, 3, v1")
        a("v_lshl_add_u32 v5, v3, 3, v5")
        a("v_xor_b32 v6, 32, v5")
        VU = 48
        for tt in range(2):
            for ks in range(4):
                for hf in range(2):
                    a(f"ds_read_b64_tr_b16 {vr(VU+(tt*4+ks)*4+2*hf,2)}, v{5+tt} offset:{ks*8192+hf*1024}")
        a("v_and_b32 v3, 3, v1")
        a("v_lshlrev_b32 v3, 3, v3")
        a("v_bfe_u32 v7, v1, 2, 3")
        a("v_add_u32 v3, v3, v7")
        a(f"s_lshl_b32 s6, s3, 7\ns_add_u32 s6, s6, {AL}")
        a("v_lshl_add_u32 v7, v3, 2, s6")
        a(f"v_lshl_add_u32 v9, v{VG}, 5, s6")
        a("s_lshl_b32 s22, s8, 17\ns_lshl_b32 s6, s9, 15\ns_add_u32 s22, s22, s6\ns_lshl_b32 s6, s3, 13\ns_add_u32 s22, s22, s6")
        a(f"s_add_u32 s22, s22, {WS_OP}")
        a("s_add_u32 s23, s22, 4096")
        a(f"v_and_b32 v3, 1, v{VG}")
        a("v_lshlrev_b32 v3, 3, v3")
        a(f"v_lshl_add_u32 v3, v{VL}, 4, v3")
        a(f"s_lshl_b32 s6, s3, 8\ns_add_u32 s6, s6, {LAT}")
        a("v_add_u32 v205, s6, v3")
        a("v_bfe_u32 v3, v1, 2, 2")
        a("v_lshlrev_b32 v3, 8, v3")
        a(f"v_lshl_add_u32 v3, v{VG}, 4, v3")
        a(f"v_add_u32 v206, {LAT}, v3")
        a("s_lshl_b32 s24, s8, 2\ns_add_u32 s24, s24, s9\ns_lshl_b32 s24, s24, 11\ns_lshl_b32 s6, s3, 7\ns_add_u32 s24, s24, s6")
        a(f"s_add_u32 s24, s24, {WS_CX}")
        a("v_bfe_u32 v3, v1, 2, 2")
        a("v_lshlrev_b32 v3, 9, v3")
        a(f"v_lshl_add_u32 v3, v{VG}, 4, v3")
        a("v_and_b32 v2, 1, v1")
        a("v_lshl_add_u32 v207, v2, 6, v3")
        self.poll_group("ml", 1, ml_issue, lambda j: a("v_cmp_ne_u64 vcc, s[4:5], v[18:19]"), lambda j: None, ["ml0"])
        self.stamp(8)
        VOD = 80
        def op_issue(j, tag):
            a(f"buffer_load_dwordx4 {vr(VOD+4*j,4)}, v{VL16}, {WS}, s{22+j//4} offen offset:{(j%4)*1024} sc1", tag)
        a.vm_reset()
        for j in range(8):
            op_issue(j, f"op{j}")
        a("v_mov_b32 v20, v16")
        self.allreduce([20], [21], "v_max_f32", False)
        a("v_sub_f32 v20, v16, v20")
        a("v_exp_f32 v20, v20")
        a("v_mul_f32 v22, v20, v17")
        self.allreduce([22], [21], "v_add_f32", False)
        a("v_rcp_f32 v22, v22")
        a("v_mul_f32 v20, v20, v22")
        a("v_cvt_pk_bf16_f32 v20, v20, v20")
        a("ds_write_b32 v7, v20")
        a("s_waitcnt lgkmcnt(0)")
        a("ds_read_b128 v[16:19], v9")
        a("ds_read_b128 v[20:23], v9 offset:16")
        a("s_waitcnt lgkmcnt(0)")
        VSA = 112
        for t in range(8):
            for r in range(4):
                a(f"v_and_b32 v{VSA+4*t+r}, v{16+t}, v{VM+r}")
        self.poll_group("op", 8, op_issue, lambda j: a(f"v_cmp_eq_u32 vcc, -1, v{VOD+4*j}"), lambda j: None,
                        [f"op{j}" for j in range(8)])
        self.stamp(9)
        for t in range(8):
            c = "0" if t == 0 else "v[24:27]"
            a(f"v_mfma_f32_16x16x32_bf16 v[24:27], {vr(VSA+4*t,4)}, {vr(VOD+4*t,4)}, {c}")
        a("v_mov_b32 v42, s4\nv_mov_b32 v43, s5")
        a("v_cmp_eq_u32 vcc, 1, v2")
        a("v_cvt_pk_bf16_f32 v28, v24, v25")
        a("v_cvt_pk_bf16_f32 v29, v26, v27")
        a("ds_write_b64 v205, v[28:29]")
        a("s_waitcnt lgkmcnt(0)")
        a("s_barrier")
        for ks in range(4):
            a(f"ds_read_b128 {vr(144+4*ks,4)}, v206 offset:{64*ks}")
        for ks in range(4):
            a(f"s_waitcnt lgkmcnt({3-ks})")
            for tt in range(2):
                c = "0" if ks == 0 else vr(32+4*tt, 4)
                a(f"v_mfma_f32_16x16x32_bf16 {vr(32+4*tt,4)}, {vr(VU+(tt*4+ks)*4,4)}, {vr(144+4*ks,4)}, {c}")
        a("v_cvt_pk_bf16_f32 v28, v32, v33")
        a("v_cvt_pk_bf16_f32 v29, v34, v35")
        a("v_cvt_pk_bf16_f32 v30, v36, v37")
        a("v_cvt_pk_bf16_f32 v31, v38, v39")
        a("v_cndmask_b32 v40, v28, v30, vcc")
        a("v_cndmask_b32 v41, v29, v31, vcc")
        a("s_mov_b32 s6, 0x33333333\ns_mov_b32 exec_lo, s6\ns_mov_b32 exec_hi, s6")
        a(f"buffer_store_dwordx4 v[40:43], v207, {WS}, s24 offen sc1")
        self.stamp(10)
        self.stamps_out()
        a("s_endpgm")

    def ffn(self):
        a, o = self.a, self.o
        nt = o["nt"]
        a.vm_reset()
        UK, XN, ASTG, RED = 73728, 73728 + 65536, 73728 + 65536 + 9216, 73728
        self.srd(44, 24, 512 * 8192)
        self.srd(48, 72, 4608 * 1152)
        a("s_load_dwordx4 s[96:99], s[0:1], 56")
        a(f"s_sub_u32 s8, s2, {WG_FFN}")
        VM, VG, VL = 10, 14, 15
        a(f"v_lshrrev_b32 v{VG}, 4, v1\nv_and_b32 v{VL}, 15, v1")
        VOA, VE, VX, VT, VQ = 4, 8, 152, 160, 16
        a("s_mov_b32 s26, s8")
        self.outp_addr(VOA, 26)
        a("s_lshr_b32 s10, s8, 1")
        a("s_and_b32 s6, s8, 1\ns_lshl_b32 s6, s6, 2\ns_add_u32 s11, s6, s3")
        a("s_lshl_b32 s9, s11, 19\ns_lshl_b32 s6, s10, 8\ns_add_u32 s9, s9, s6")
        a(f"v_lshlrev_b32 v6, 13, v{VG}")
        a(f"v_lshl_add_u32 v6, v{VL}, 4, v6")
        a(f"s_lshl_b32 s12, s3, 14\ns_add_u32 s12, s12, {UK}")
        a("s_waitcnt lgkmcnt(0)")
        self.load_epoch_x(VE, VX)
        self.outp_clear(VOA, 26, VQ)
        a("s_cmp_ge_u32 s8, 64")
        a("s_cbranch_scc1 L_ffn_nouk")
        for t in range(16):
            a(f"v_xor_b32 v7, {16*t}, v6")
            a(f"s_add_u32 m0, s12, {t*1024}")
            a(f"s_add_u32 s6, s9, {t*4*8192}")
            a(f"buffer_load_dwordx4 v7, {SA}, s6 offen {nt} lds", "uk")
        a("s_waitcnt vmcnt(19)")
        a("s_branch L_ffn_ln")
        a.label("L_ffn_nouk")
        a("s_waitcnt vmcnt(3)")
        a.label("L_ffn_ln")
        self.stamp(1)
        self.get_tag(VE)
        self.layernorm(VX, VT, XN)
        self.masks(VM)
        VSA = 20
        self.stage_addr(VSA, ASTG)
        VWD, VWT = 23, 24
        self.w_dma_setup(VWD)
        self.w_tr_addr(VWT)
        a("s_mul_i32 s29, s3, 9216")
        a(f"s_mul_i32 s28, s8, {64*1152}\ns_add_u32 s28, s28, s29")
        a("s_lshl_b32 s6, s3, 2")
        a(f"v_add_u32 v28, s6, v{VG}")
        a(f"v_mul_u32_u24 v2, {36*9216}, v28")
        a("v_and_b32 v3, 7, v1")
        a("v_lshl_add_u32 v2, v3, 4, v2")
        a("s_lshl_b32 s6, s8, 7")
        a("v_add_u32 v2, s6, v2")
        a("v_mov_b32 v3, 0")
        a(f"v_cmp_gt_u32 vcc, 8, v{VL}")
        a("v_mov_b32 v26, s98\nv_mov_b32 v27, s99\nv_mov_b32 v29, s96\nv_mov_b32 v30, s97")
        a("v_cndmask_b32 v26, v26, v29, vcc")
        a("v_cndmask_b32 v27, v27, v30, vcc")
        a("v_lshl_add_u64 v[26:27], v[2:3], 0, v[26:27]")
        a("s_mov_b32 s30, 9216\ns_mov_b32 s31, 0")
        a("v_mul_u32_u24 v28, 144, v28")
        a("v_bfe_u32 v2, v1, 3, 1")
        a("v_mul_u32_u24 v2, 2304, v2")
        a(f"v_add3_u32 v28, v28, v2, {XN}" if False else f"v_add_u32 v28, v28, v2\nv_add_u32 v28, {XN}, v28")
        a("s_waitcnt lgkmcnt(0)")
        a("s_barrier")
        VXN = 176
        for ch in range(2):
            for k in range(9):
                a(f"ds_read_b128 {vr(VXN+36*ch+4*k,4)}, v28 offset:{ch*4608+16*k}")
        a("s_cmp_ge_u32 s8, 64")
        a("s_cbranch_scc1 L_ffn_noqa")
        a("s_waitcnt vmcnt(16)")
        self.notice(26, VQ)
        a(f"v_xor_b32 v2, v{VG}, v{VL}")
        a("v_lshlrev_b32 v2, 4, v2")
        a(f"v_lshl_add_u32 v2, v{VL}, 10, v2")
        a("v_add_u32 v32, s12, v2")
        for ks in range(1, 4):
            a(f"v_xor_b32 v{32+ks}, {64*ks}, v32")
        a(f"s_lshl_b32 s13, s10, 13\ns_add_u32 s13, s13, {WS_QP}")
        a("s_lshl_b32 s14, s10, 11\ns_lshl_b32 s6, s11, 8\ns_add_u32 s14, s14, s6")
        a(f"s_add_u32 s14, s14, {WS_QA}")
        a(f"v_lshlrev_b32 v36, 16, v{VG}")
        a(f"v_lshl_add_u32 v36, v{VL}, 4, v36")
        a("s_waitcnt vmcnt(1)")
        self.stamp(2)
        for tt in range(4):
            for ks in range(4):
                a(f"ds_read_b128 {ar((tt*4+ks)*4,4)}, v{32+ks} offset:{tt*256}")
        a.vm_reset()
        self.stage_partials("qp", 13, 40, VSA, ASTG, 48)
        self.stamp(3)
        a("v_mov_b32 v86, s4\nv_mov_b32 v87, s5")
        for ks in range(4):
            a(f"s_waitcnt lgkmcnt({3-ks})")
            for tt in range(4):
                c = "0" if ks == 0 else vr(64+4*tt, 4)
                a(f"v_mfma_f32_16x16x32_bf16 {vr(64+4*tt,4)}, {vr(48+4*ks,4)}, {ar((tt*4+ks)*4,4)}, {c}")
        sc = f2u(128 ** -0.5 * math.log2(math.e))
        for tt in range(4):
            a(f"v_add_f32 v{64+4*tt}, v{64+4*tt}, v{65+4*tt}")
            a(f"v_add_f32 v{66+4*tt}, v{66+4*tt}, v{67+4*tt}")
        for tt in range(4):
            a(f"v_add_f32 v{80+tt}, v{64+4*tt}, v{66+4*tt}")
        for tt in range(4):
            a(f"v_mul_f32 v{80+tt}, {sc}, v{80+tt}")
        a("v_cvt_pk_bf16_f32 v84, v80, v81")
        a("v_cvt_pk_bf16_f32 v85, v82, v83")
        a(f"buffer_store_dwordx4 v[84:87], v36, {WS}, s14 offen sc1")
        a("s_branch L_ffn_main")
        a.label("L_ffn_noqa")
        a("s_waitcnt vmcnt(0)")
        self.notice(26, VQ)
        a.label("L_ffn_main")
        self.stamp(4)
        a.vm_reset()
        for m in range(2):
            self.w_dma_issue(VWD, SB, 28, m, "w2")
        VW = 32
        D = o["ffn_depth"]
        def ld(t):
            a(f"global_load_dwordx4 {vr(VW+4*t,4)}, v[26:27], off {nt}", f"w{t}")
            if t < 35:
                a("v_lshl_add_u64 v[26:27], v[26:27], 0, s[30:31]")
        for t in range(D):
            ld(t)
        AA = 128
        VA0 = (248, 252)
        VACC = 16
        VACC2 = 6
        acc = (16, 20)
        acc = (16, 28)
        for t in range(36):
            for ch in range(2):
                if t == 0 and ch == 0:
                    a("s_waitcnt lgkmcnt(0)")
                for r in range(4):
                    a(f"v_and_b32 v{VA0[ch]+r}, v{VXN+36*ch+t}, v{VM+r}")
                if ch == 0:
                    a.wait_vm(f"w{t}")
                    if t == 0:
                        a("s_barrier")
                        self.w_tr_reads(VWT, 2)
                c = "0" if t == 0 else vr(acc[ch], 4)
                a(f"v_mfma_f32_16x16x32_bf16 {vr(acc[ch],4)}, {vr(VA0[ch],4)}, {vr(VW+4*t,4)}, {c}")
            if t + D < 36:
                ld(t + D)
            if t == 30:
                a(f"s_lshl_b32 s6, s3, 11\ns_add_u32 s6, s6, {RED}")
                a("v_lshl_add_u32 v20, v1, 4, s6")
                a("v_bfe_u32 v2, v1, 2, 2")
                a("v_lshlrev_b32 v2, 9, v2")
                a("v_and_b32 v3, 1, v1")
                a("v_lshl_add_u32 v2, v3, 8, v2")
                a("v_bfe_u32 v3, v1, 1, 1")
                a("v_lshl_add_u32 v2, v3, 6, v2")
                a(f"v_lshl_add_u32 v2, v{VG}, 4, v2")
                a(f"v_add_u32 v21, {RED}, v2")
        self.stamp(5)
        a(f"ds_write_b128 v20, {vr(acc[0],4)}")
        a(f"ds_write_b128 v20, {vr(acc[1],4)} offset:1024")
        a("v_and_b32 v3, 3, v1")
        for k in range(4):
            a(f"v_cmp_eq_u32 vcc, {k}, v3")
            a(f"v_cndmask_b32 v{VM+k}, 0, -1, vcc")
        a("s_waitcnt lgkmcnt(0)")
        a("s_barrier")
        for w in range(4):
            a(f"ds_read_b128 {vr(32+4*w,4)}, v21 offset:{2048*w}")
        for w in range(4):
            a(f"ds_read_b128 {vr(48+4*w,4)}, v21 offset:{2048*w+128}")
        a("s_mov_b32 s7, 0xffff0000")
        for base, wt in ((32, 4), (48, 0)):
            a(f"s_waitcnt lgkmcnt({wt})")
            for k in range(2):
                a(f"v_pk_add_f32 {vr(base+2*k,2)}, {vr(base+2*k,2)}, {vr(base+4+2*k,2)}")
                a(f"v_pk_add_f32 {vr(base+8+2*k,2)}, {vr(base+8+2*k,2)}, {vr(base+12+2*k,2)}")
            for k in range(2):
                a(f"v_pk_add_f32 {vr(base+2*k,2)}, {vr(base+2*k,2)}, {vr(base+8+2*k,2)}")
            a(f"v_cvt_pk_bf16_f32 v{base+4}, v{base}, v{base+1}")
            a(f"v_cvt_pk_bf16_f32 v{base+5}, v{base+2}, v{base+3}")
            a(f"v_lshlrev_b32 v{base}, 16, v{base+4}\nv_and_b32 v{base+1}, s7, v{base+4}")
            a(f"v_lshlrev_b32 v{base+2}, 16, v{base+5}\nv_and_b32 v{base+3}, s7, v{base+5}")
            if base == 32:
                nl2e = f2u(-math.log2(math.e))
                for k in range(4):
                    a(f"v_mul_f32 v{36+k}, {nl2e}, v{32+k}")
                for k in range(4):
                    a(f"v_exp_f32 v{36+k}, v{36+k}")
                for k in range(4):
                    a(f"v_add_f32 v{36+k}, 1.0, v{36+k}")
                for k in range(4):
                    a(f"v_rcp_f32 v{36+k}, v{36+k}")
                for k in range(4):
                    a(f"v_mul_f32 v{32+k}, v{32+k}, v{36+k}")
                a("v_cvt_pk_bf16_f32 v36, v32, v33\nv_cvt_pk_bf16_f32 v37, v34, v35")
                a("v_lshlrev_b32 v32, 16, v36\nv_and_b32 v33, s7, v36\nv_lshlrev_b32 v34, 16, v37\nv_and_b32 v35, s7, v37")
        for k in range(4):
            a(f"v_mul_f32 v{32+k}, v{32+k}, v{48+k}")
        a("v_cvt_pk_bf16_f32 v36, v32, v33\nv_cvt_pk_bf16_f32 v37, v34, v35")
        for ks in range(2):
            for q2 in range(2):
                for m in range(2):
                    a(f"v_and_b32 v{40+4*ks+2*q2+m}, v{36+m}, v{VM+2*ks+q2}")
        self.dense_out(40, 2, 64, VOA, 26)
        self.stamp(6)
        self.stamps_out()
        a("s_endpgm")

    def wo(self):
        a, o = self.a, self.o
        a.vm_reset()
        ASTG = 147456
        self.srd(44, 40, 32 * 147456)
        a(f"s_sub_u32 s8, s2, {WG_WO}")
        VOA, VE, VQ, VSA, VWD, VWT = 4, 8, 16, 20, 23, 24
        a("s_add_u32 s26, s8, 72")
        self.outp_addr(VOA, 26)
        self.w_dma_setup(VWD)
        a("s_mul_i32 s29, s3, 9216")
        a("s_mul_i32 s28, s8, 147456\ns_add_u32 s28, s28, s29")
        a("s_waitcnt lgkmcnt(0)")
        a(f"buffer_load_dwordx2 {vr(VE,2)}, off, {WS}, 0 sc1", "ep")
        self.outp_clear(VOA, 26, VQ)
        self.w_dma_issue(VWD, SA, 28, 0, "w")
        a.wait_vm("clr")
        self.get_tag(VE)
        self.notice(26, VQ)
        for m in range(1, 4):
            self.w_dma_issue(VWD, SA, 28, m, "w")
        self.stage_addr(VSA, ASTG)
        self.w_tr_addr(VWT)
        a(f"s_lshl_b32 s13, s8, 13\ns_add_u32 s13, s13, {WS_CX}")
        a("s_waitcnt vmcnt(0)")
        a("s_barrier")
        self.stamp(1)
        self.w_tr_reads(VWT, 4)
        a.vm_reset()
        self.stage_partials("cx", 13, 40, VSA, ASTG, 48)
        self.stamp(2)
        a("s_waitcnt lgkmcnt(0)")
        self.dense_out(48, 4, 64, VOA, 26)
        self.stamp(3)
        self.stamps_out()
        a("s_endpgm")

    def fin(self):
        a, o = self.a, self.o
        a.vm_reset()
        self.srd(56, 80, 4608)
        a(f"s_sub_u32 s8, s2, {WG_FIN}")
        a("s_lshr_b32 s6, s3, 1\ns_lshl_b32 s9, s8, 1\ns_add_u32 s9, s9, s6")
        a("s_and_b32 s10, s3, 1")
        a("s_mul_i32 s11, s9, 57\ns_lshr_b32 s11, s11, 9")
        a("s_mul_i32 s6, s11, 9\ns_sub_u32 s12, s9, s6")
        VG, VL = 14, 15
        a(f"v_lshrrev_b32 v{VG}, 4, v1\nv_and_b32 v{VL}, 15, v1")
        a("s_and_b32 s6, s12, 3\ns_mul_i32 s6, s6, 576\ns_lshr_b32 s7, s12, 2\ns_lshl_b32 s7, s7, 8\ns_add_u32 s6, s6, s7")
        a("s_lshl_b32 s7, s11, 4\ns_add_u32 s6, s6, s7")
        a(f"v_lshl_add_u32 v4, v{VG}, 6, v{VL}")
        a("v_bfe_u32 v2, v1, 2, 2")
        a("v_mul_u32_u24 v2, 576, v2")
        a("v_and_b32 v3, 3, v1")
        a("v_lshl_add_u32 v2, v3, 2, v2")
        a(f"v_add_u32 v2, v2, v{VG}")
        a("s_cmp_eq_u32 s12, 8")
        a("s_cselect_b64 vcc, -1, 0")
        a("v_cndmask_b32 v4, v4, v2, vcc")
        a("v_add_u32 v4, s6, v4")
        a("v_lshlrev_b32 v4, 1, v4")
        a(f"v_mul_u32_u24 v5, 9216, v{VG}")
        a(f"v_lshl_add_u32 v5, v{VL}, 4, v5")
        a(f"s_mul_i32 s13, s10, {4*9216}\ns_lshl_b32 s6, s9, 8\ns_add_u32 s13, s13, s6\ns_add_u32 s13, s13, {WS_OUTP}")
        a("v_min_u32 v2, 51, v1")
        a("v_lshrrev_b32 v3, 2, v2")
        a("v_and_b32 v2, 3, v2")
        a("v_lshl_add_u32 v2, v3, 3, v2")
        a("v_lshlrev_b32 v6, 6, v2")
        a(f"s_mul_i32 s14, s11, {104*64}\ns_lshl_b32 s6, s10, 8\ns_add_u32 s14, s14, s6\ns_add_u32 s14, s14, {WS_NOTICE}")
        a("s_waitcnt lgkmcnt(0)")
        a(f"buffer_load_dwordx2 v[8:9], off, {WS}, 0 sc1", "ep")
        a(f"buffer_load_ushort v10, v4, {XS}, 0 offen", "x")
        a("s_waitcnt vmcnt(0)")
        self.get_tag(8)
        a("s_barrier")
        a("v_mov_b32 v16, s4\nv_mov_b32 v17, s5\nv_mov_b32 v18, s4\nv_mov_b32 v19, s5")
        a("s_cmp_lg_u32 s3, 0")
        a("s_cbranch_scc1 L_fin_nost")
        a(f"s_lshl_b32 s6, s8, 7\ns_add_u32 s6, s6, {WS_STARTED}")
        a("s_mov_b64 exec, 1")
        a(f"buffer_store_dwordx4 v[16:19], off, {WS}, s6 sc1", "-")
        a("s_mov_b64 exec, -1")
        a.label("L_fin_nost")
        a("s_lshl_b32 s15, s8, 2\ns_add_u32 s15, s15, s3")
        a("s_cmp_lg_u32 s15, 1")
        a("s_cbranch_scc1 L_fin_nobump")
        a(f"v_min_u32 v7, {N_FIN-1}, v1")
        a("v_lshlrev_b32 v7, 7, v7")
        a(f"s_mov_b32 s16, {WS_STARTED}")
        a.vm_reset()
        self.poll_group("st", 1, lambda j, tag: a(f"buffer_load_dwordx4 v[20:23], v7, {WS}, s16 offen sc1", tag),
                        lambda j: a("v_cmp_ne_u64 vcc, s[4:5], v[22:23]"), lambda j: None)
        a.label("L_fin_nobump")
        a.vm_reset()
        self.poll_group("nt", 1, lambda j, tag: a(f"buffer_load_dwordx4 v[20:23], v6, {WS}, s14 offen sc1", tag),
                        lambda j: a("v_cmp_ne_u64 vcc, s[4:5], v[22:23]"), lambda j: None)
        self.stamp(1)
        VD = 32
        def issue(j, tag):
            a(f"s_add_u32 s6, s13, {j*8*9216}")
            a(f"buffer_load_dwordx4 {vr(VD+4*j,4)}, v5, {WS}, s6 offen sc1", tag)
        def check(j):
            a(f"v_max3_u32 v2, v{VD+4*j}, v{VD+4*j+1}, v{VD+4*j+2}")
            a(f"v_max_u32 v2, v2, v{VD+4*j+3}")
            a("v_cmp_eq_u32 vcc, -1, v2")
        a.vm_reset()
        self.poll_group("pre", 1, issue, check, lambda j: None)
        self.stamp(2)
        a.vm_reset()
        self.poll_group("pa", 12, lambda j, tag: issue(j+1, tag), lambda j: check(j+1), lambda j: None)
        self.stamp(3)
        n = 13
        while n > 1:
            h = n // 2
            for j in range(h):
                src = n - 1 - j
                for k in range(2):
                    a(f"v_pk_add_f32 {vr(VD+4*j+2*k,2)}, {vr(VD+4*j+2*k,2)}, {vr(VD+4*src+2*k,2)}")
            n -= h
        a(f"v_permlane32_swap_b32 v{VD}, v{VD+2}")
        a(f"v_permlane32_swap_b32 v{VD+1}, v{VD+3}")
        a(f"v_add_f32 v{VD}, v{VD}, v{VD+2}")
        a(f"v_add_f32 v{VD+1}, v{VD+1}, v{VD+3}")
        a(f"v_permlane16_swap_b32 v{VD}, v{VD+1}")
        a(f"v_add_f32 v{VD}, v{VD}, v{VD+1}")
        a("s_lshr_b32 s6, s3, 1\ns_lshl_b32 s6, s6, 8")
        a("v_lshl_add_u32 v2, v1, 2, s6")
        a("s_cmp_eq_u32 s10, 0")
        a("s_cbranch_scc1 L_fin_even")
        a(f"ds_write_b32 v2, v{VD}")
        a("s_waitcnt lgkmcnt(0)")
        a("s_barrier")
        a("s_cmp_lg_u32 s15, 1")
        a("s_cbranch_scc1 L_fin_end")
        a("s_mov_b64 exec, 1")
        a(f"buffer_store_dwordx2 v[16:17], off, {WS}, 0 sc1")
        a("s_branch L_fin_end")
        a.label("L_fin_even")
        a("v_lshlrev_b32 v10, 16, v10")
        a(f"v_add_f32 v{VD}, v{VD}, v10")
        a("s_barrier")
        a("ds_read_b32 v3, v2")
        a("s_waitcnt lgkmcnt(0)")
        a(f"v_add_f32 v{VD}, v{VD}, v3")
        a(f"v_cvt_pk_bf16_f32 v{VD}, v{VD}, v{VD}")
        a(f"buffer_store_short v{VD}, v4, {SD}, 0 offen")
        a.label("L_fin_end")
        self.stamp(4)
        self.stamps_out()
        a("s_endpgm")

    def build(self):
        a = self.a
        self.preamble()
        self.att()
        a.label("L_notatt")
        a(f"s_cmp_ge_u32 s2, {WG_WO}")
        a("s_cbranch_scc1 L_notffn")
        self.ffn()
        a.label("L_notffn")
        a(f"s_cmp_ge_u32 s2, {WG_FIN}")
        a("s_cbranch_scc1 L_fin")
        self.wo()
        a.label("L_fin")
        self.fin()
        a.label("L_end")
        a("s_endpgm")
        a.label("L_codeend")
        body = a.finalize()
        head = open(f"cdna_kernels/{NAME}.s.ref").read().split("; @launch")[0]
        txt = head + f"; @launch grid=({NWG},1,1) block=(256,1,1) lds=163840\n"
        txt += f""".amdgcn_target "amdgcn-amd-amdhsa--gfx950"
.text
.globl {NAME}_kernel
.p2align 8
.type {NAME}_kernel,@function
{NAME}_kernel:
{body}.section .rodata,"a"
.p2align 6
.amdhsa_kernel {NAME}_kernel
  .amdhsa_next_free_vgpr 512
  .amdhsa_next_free_sgpr 102
  .amdhsa_accum_offset 256
  .amdhsa_group_segment_fixed_size 0
  .amdhsa_kernarg_size 104
  .amdhsa_user_sgpr_count 2
  .amdhsa_user_sgpr_kernarg_segment_ptr 1
  .amdhsa_system_sgpr_workgroup_id_x 1
.end_amdhsa_kernel
"""
        return txt

def gen(**kw):
    return Gen(**kw).build()

if __name__ == "__main__":
    out = sys.argv[1] if len(sys.argv) > 1 else f"cdna_kernels/{NAME}.s"
    kw = {}
    for x in sys.argv[2:]:
        k, v = x.split("=")
        kw[k] = eval(v)
    open(out, "w").write(gen(**kw))
```

```python
import sys, struct, math
sys.path.insert(0, "gen")
from asmlib import Asm

NAME = "parallel_sum__compressed_kv_cla__glu_gated_swiglu__decode"
N_ATT, N_FFN, N_WO, N_FIN = 128, 72, 32, 18
WG_FFN, WG_WO, WG_FIN = 128, 200, 232
NWG = 250
WS_STARTED, WS_NOTICE, WS_QP, WS_QA, WS_ML, WS_CX = 0x1000, 0x4000, 0x10000, 0x50000, 0x90000, 0xA0000
WS_OUTP, WS_OP, WS_STAMP, WS_SIZE = 0x100000, 0x200000, 0x600000, 0x800000
MAXIT = 20000

def f2u(x):
    return "0x%08x" % struct.unpack("<I", struct.pack("<f", x))[0]

def vr(b, n=1):
    return f"v{b}" if n == 1 else f"v[{b}:{b+n-1}]"
def ar(b, n=1):
    return f"a{b}" if n == 1 else f"a[{b}:{b+n-1}]"

WS, XS, SA, SB, SC, SD = "s[36:39]", "s[40:43]", "s[44:47]", "s[48:51]", "s[52:55]", "s[56:59]"

DEF = dict(diag=False, nt="nt", ffn_depth=20, prefetch=True, q0a=2)

class Gen:
    def __init__(self, **kw):
        self.o = dict(DEF); self.o.update(kw)
        self.a = Asm()
        self.nst = 0

    def stamp(self, k):
        if self.o["diag"]:
            self.a(f"s_memrealtime s[{64+2*k}:{65+2*k}]")

    def stamps_out(self, dbg=None, n=16):
        a = self.a
        if not self.o["diag"]:
            return
        a("s_memtime s[94:95]")
        if self.o["diag"] == "dbg":
            wg, lst = dbg
            L = a.newlabel("nodbg")
            a(f"s_lshl_b32 s6, s2, 2\ns_add_u32 s6, s6, s3\ns_cmp_lg_u32 s6, {wg*4}")
            a(f"s_cbranch_scc1 {L}")
            self.srd(52, 88, 256)
            a("s_waitcnt lgkmcnt(0)")
            a("s_sub_u32 s94, s94, s92")
            a("s_mov_b64 exec, 1")
            for k, slot in lst:
                a(f"v_mov_b32 v2, s{64+2*k}")
                a("v_and_b32 v2, 0xfffff, v2")
                a(f"buffer_store_dword v2, off, {SC}, 0 offset:{4*slot}")
            a.label(L)
            return
        a("s_waitcnt lgkmcnt(0)")
        a("s_mov_b64 exec, -1")
        for k in range(n):
            a(f"v_writelane_b32 v2, s{64+2*k}, {k}")
        a("s_lshl_b32 s6, s2, 2\ns_add_u32 s6, s6, s3\ns_lshl_b32 s6, s6, 6")
        a(f"s_add_u32 s6, s6, {WS_STAMP}")
        a("v_lshlrev_b32 v3, 2, v1")
        a("s_mov_b64 exec, 0xffff")
        a(f"buffer_store_dword v2, v3, {WS}, s6 offen")

    def srd(self, base, koff, size):
        a = self.a
        a(f"s_load_dwordx2 s[{base}:{base+1}], s[0:1], {koff}")
        a(f"s_mov_b32 s{base+2}, {size}")
        a(f"s_mov_b32 s{base+3}, 0x00020000")

    def allreduce(self, regs, tmpregs, op, to64):
        a = self.a
        for sh in (8, 4, 2, 1):
            for r in regs:
                a(f"{op}_dpp v{r}, v{r}, v{r} row_ror:{sh} row_mask:0xf bank_mask:0xf")
        for sw in (["v_permlane16_swap_b32"] + (["v_permlane32_swap_b32"] if to64 else [])):
            for r, t in zip(regs, tmpregs):
                a(f"v_mov_b32 v{t}, v{r}")
            for r, t in zip(regs, tmpregs):
                a(f"{sw} v{r}, v{t}")
            for r, t in zip(regs, tmpregs):
                a(f"{op} v{r}, v{r}, v{t}")

    def get_tag(self, v):
        a = self.a
        a(f"v_readfirstlane_b32 s4, v{v}")
        a(f"v_readfirstlane_b32 s5, v{v+1}")
        a("s_add_u32 s4, s4, 1\ns_addc_u32 s5, s5, 0")

    def load_epoch_x(self, ve, vx):
        a = self.a
        a(f"buffer_load_dwordx2 {vr(ve,2)}, off, {WS}, 0 sc1", "ep")
        a("s_mul_i32 s6, s3, 1152")
        a("v_lshlrev_b32 v2, 4, v1")
        a("v_lshlrev_b32 v3, 1, v1")
        a(f"buffer_load_dwordx4 {vr(vx,4)}, v2, {XS}, s6 offen", "x")
        a(f"buffer_load_ushort {vr(vx+4)}, v3, {XS}, s6 offen offset:1024", "x")

    def layernorm(self, vx, vt, ldsbase):
        a = self.a
        f = [vt + k for k in range(9)]
        d = [vt + 12 + k for k in range(9)]
        s1, s2, t1, t2, m, r = vt + 22, vt + 23, vt + 24, vt + 25, vt + 26, vt + 27
        a("s_mov_b32 s7, 0xffff0000")
        for k in range(4):
            a(f"v_lshlrev_b32 v{f[2*k]}, 16, v{vx+k}")
            a(f"v_and_b32 v{f[2*k+1]}, s7, v{vx+k}")
        a(f"v_lshlrev_b32 v{f[8]}, 16, v{vx+4}")
        a(f"v_readfirstlane_b32 s6, v{f[0]}")
        for k in range(9):
            a(f"v_subrev_f32 v{d[k]}, s6, v{f[k]}")
        a(f"v_add_f32 v{s1}, v{d[0]}, v{d[1]}")
        a(f"v_mul_f32 v{s2}, v{d[0]}, v{d[0]}")
        a(f"v_fmac_f32 v{s2}, v{d[1]}, v{d[1]}")
        for k in range(2, 9):
            a(f"v_add_f32 v{s1}, v{s1}, v{d[k]}")
            a(f"v_fmac_f32 v{s2}, v{d[k]}, v{d[k]}")
        self.allreduce([s1, s2], [t1, t2], "v_add_f32", True)
        inv = f2u(1.0 / 576.0)
        a(f"v_mul_f32 v{s1}, {inv}, v{s1}")
        a(f"v_mul_f32 v{s2}, {inv}, v{s2}")
        a(f"v_fma_f32 v{s2}, -v{s1}, v{s1}, v{s2}")
        a(f"v_add_f32 v{s1}, s6, v{s1}")
        a(f"v_max_f32 v{s2}, 0, v{s2}")
        a(f"v_cvt_pk_bf16_f32 v{t1}, v{s1}, v{s2}")
        a(f"v_lshlrev_b32 v{m}, 16, v{t1}")
        a(f"v_and_b32 v{t2}, s7, v{t1}")
        a(f"v_add_f32 v{t2}, {f2u(1e-5)}, v{t2}")
        a(f"v_cvt_pk_bf16_f32 v{t2}, v{t2}, v{t2}")
        a(f"v_and_b32 v{t2}, s7, v{t2}")
        a(f"v_sqrt_f32 v{t2}, v{t2}")
        for k in range(9):
            a(f"v_sub_f32 v{f[k]}, v{f[k]}, v{m}")
        a(f"v_cvt_pk_bf16_f32 v{t2}, v{t2}, v{t2}")
        a(f"v_and_b32 v{t2}, s7, v{t2}")
        a(f"v_rcp_f32 v{r}, v{t2}")
        for k in range(4):
            a(f"v_cvt_pk_bf16_f32 v{f[2*k+1]}, v{f[2*k]}, v{f[2*k+1]}")
        a(f"v_cvt_pk_bf16_f32 v{f[8]}, v{f[8]}, v{f[8]}")
        for k in range(4):
            a(f"v_lshlrev_b32 v{f[2*k]}, 16, v{f[2*k+1]}")
            a(f"v_and_b32 v{f[2*k+1]}, s7, v{f[2*k+1]}")
        a(f"v_and_b32 v{f[8]}, s7, v{f[8]}")
        for k in range(9):
            a(f"v_mul_f32 v{f[k]}, v{f[k]}, v{r}")
        for k in range(9):
            a(f"v_cvt_pk_bf16_f32 v{d[k]}, v{f[k]}, v{f[k]}")
        a("s_mul_i32 s6, s3, 2304")
        a(f"s_add_u32 s6, s6, {ldsbase}")
        a(f"v_lshl_add_u32 v{t1}, v1, 5, s6")
        a(f"v_lshl_add_u32 v{t2}, v1, 2, s6")
        a(f"ds_write_b128 v{t1}, {vr(d[0],4)}")
        a(f"ds_write_b128 v{t1}, {vr(d[4],4)} offset:16")
        a(f"ds_write_b32 v{t2}, v{d[8]} offset:2048")

    def masks(self, vm):
        a = self.a
        a("v_and_b32 v2, 1, v1")
        a("v_lshlrev_b32 v2, 4, v2")
        a("v_mov_b32 v3, 0xffff")
        a("v_lshlrev_b32 v2, v2, v3")
        a("v_bfe_u32 v3, v1, 1, 2")
        for r in range(4):
            a(f"v_cmp_eq_u32 vcc, {r}, v3")
            a(f"v_cndmask_b32 v{vm+r}, 0, v2, vcc")

    def poll_group(self, name, n, issue, check, action, first_issued=None):
        a = self.a
        allm = (1 << n) - 1
        Lp, Ld = a.newlabel(name + "_poll"), a.newlabel(name + "_done")
        a("s_mov_b32 s62, 0")
        a("s_mov_b32 s63, 0")
        if first_issued is None:
            for j in range(n):
                issue(j, f"{name}{j}")
            first_issued = [f"{name}{j}" for j in range(n)]
        for j in range(n):
            a.wait_vm(first_issued[j])
            check(j)
            action(j)
            a("s_cmp_eq_u64 vcc, 0")
            if n == 1:
                a(f"s_cbranch_scc1 {Ld}")
            else:
                a(f"s_cselect_b32 s6, {1 << j}, 0")
                a("s_or_b32 s62, s62, s6")
        if n > 1:
            a(f"s_cmp_eq_u32 s62, {allm}")
            a(f"s_cbranch_scc1 {Ld}")
        a.label(Lp)
        for j in range(n):
            if n > 1:
                Ls = a.newlabel(name + "_i")
                a(f"s_bitcmp1_b32 s62, {j}")
                a(f"s_cbranch_scc1 {Ls}")
            issue(j, "-")
            if n > 1:
                a.label(Ls)
        a("s_waitcnt vmcnt(0)")
        for j in range(n):
            if n > 1:
                Ls = a.newlabel(name + "_c")
                a(f"s_bitcmp1_b32 s62, {j}")
                a(f"s_cbranch_scc1 {Ls}")
            check(j)
            action(j)
            a("s_cmp_eq_u64 vcc, 0")
            if n == 1:
                a(f"s_cbranch_scc1 {Ld}")
            else:
                a(f"s_cselect_b32 s6, {1 << j}, 0")
                a("s_or_b32 s62, s62, s6")
                a.label(Ls)
        if n > 1:
            a(f"s_cmp_eq_u32 s62, {allm}")
            a(f"s_cbranch_scc1 {Ld}")
        a("s_add_u32 s63, s63, 1")
        a(f"s_cmp_lt_u32 s63, {MAXIT}")
        a(f"s_cbranch_scc1 {Lp}")
        a.label(Ld)

    def stage_partials(self, name, sbase, vg, vt, ldsbase, vA):
        a = self.a
        def issue(j, tag):
            a(f"buffer_load_dwordx4 {vr(vg+4*j,4)}, v{vt}, {WS}, s{sbase} offen offset:{1024*j} sc1", tag)
        def check(j):
            a(f"v_cmp_ne_u64 vcc, s[4:5], {vr(vg+4*j+2,2)}")
        def action(j):
            a(f"ds_write_b64 v{vt+1}, {vr(vg+4*j,2)} offset:{j*8*272}")
        self.poll_group(name, 2, issue, check, action)
        a("s_waitcnt lgkmcnt(0)")
        a("s_barrier")
        for ks in range(4):
            a(f"ds_read_b128 {vr(vA+4*ks,4)}, v{vt+2} offset:{64*ks}")

    def stage_addr(self, vt, ldsbase):
        a = self.a
        a("s_lshl_b32 s6, s3, 11")
        a(f"v_lshl_add_u32 v{vt}, v1, 4, s6")
        a("v_lshrrev_b32 v2, 5, v1")
        a("v_mul_u32_u24 v2, 1088, v2")
        a("v_and_b32 v3, 31, v1")
        a("v_lshl_add_u32 v2, v3, 3, v2")
        a("s_mul_i32 s6, s3, 272")
        a(f"s_add_u32 s6, s6, {ldsbase}")
        a(f"v_add_u32 v{vt+1}, s6, v2")
        a("v_and_b32 v2, 15, v1")
        a("v_mul_u32_u24 v2, 272, v2")
        a("v_lshrrev_b32 v3, 4, v1")
        a("v_lshl_add_u32 v2, v3, 4, v2")
        a(f"v_add_u32 v{vt+2}, {ldsbase}, v2")

    def w_dma_setup(self, vo):
        a = self.a
        a("v_lshrrev_b32 v2, 3, v1")
        a("v_bfe_u32 v3, v1, 1, 2")
        a(f"v_lshrrev_b32 v{vo}, 4, v1")
        a(f"v_xor_b32 v3, v3, v{vo}")
        a("s_and_b32 s6, s3, 1\ns_lshl_b32 s6, s6, 1")
        a("v_xor_b32 v3, s6, v3")
        a("v_mul_u32_u24 v2, 1152, v2")
        a("v_lshl_add_u32 v2, v3, 5, v2")
        a("v_and_b32 v3, 1, v1")
        a(f"v_lshl_add_u32 v{vo}, v3, 4, v2")

    def w_dma_issue(self, vo, srd, sg, m, tag, cbs=range(9)):
        a = self.a
        nt = self.o["nt"]
        for cb in cbs:
            a(f"s_add_u32 m0, s{sg+1}, {m*36864 + cb*1024}")
            a(f"s_add_u32 s6, s{sg}, {m*36864 + cb*128}")
            a(f"buffer_load_dwordx4 v{vo}, {srd}, s6 offen {nt} lds", tag)

    def w_tr_addr(self, vb):
        a = self.a
        a("v_lshrrev_b32 v2, 4, v1")
        a(f"v_mul_u32_u24 v{vb}, 9216, v2")
        a("v_bfe_u32 v3, v1, 2, 2")
        a(f"v_lshl_add_u32 v{vb}, v3, 7, v{vb}")
        a("v_lshrrev_b32 v3, 1, v3")
        a("v_and_b32 v2, 1, v2")
        a("v_lshlrev_b32 v2, 1, v2")
        a("v_xor_b32 v3, v3, v2")
        a("v_xor_b32 v3, s3, v3")
        a(f"v_lshl_add_u32 v{vb}, v3, 5, v{vb}")
        a("v_and_b32 v3, 3, v1")
        a(f"v_lshl_add_u32 v{vb}, v3, 3, v{vb}")
        a(f"v_xor_b32 v{vb+1}, 64, v{vb}")
        a(f"v_add_u32 v{vb+1}, 512, v{vb+1}")

    def w_tr_reads(self, vb, nks):
        a = self.a
        for ks in range(nks):
            if ks == 2:
                a(f"v_add_u32 v{vb}, {2*36864}, v{vb}")
                a(f"v_add_u32 v{vb+1}, {2*36864}, v{vb+1}")
            for cb in range(9):
                for hf in range(2):
                    a(f"ds_read_b64_tr_b16 {ar((ks*9+cb)*4+2*hf,2)}, v{vb+hf} offset:{(ks%2)*36864 + cb*1024}")

    def outp_addr(self, va, sp):
        a = self.a
        a(f"v_lshlrev_b32 v{va}, 4, v1")
        a(f"v_lshlrev_b32 v{va+1}, 2, v1")
        a(f"s_mul_i32 s6, s3, {104*64}")
        a(f"s_lshl_b32 s{sp+1}, s{sp}, 6")
        a(f"s_add_u32 s{sp+1}, s{sp+1}, s6")
        a(f"s_add_u32 s{sp+1}, s{sp+1}, {WS_NOTICE}")
        a(f"s_mul_i32 s{sp}, s{sp}, 9216")
        a("s_mul_i32 s6, s3, 2304")
        a(f"s_add_u32 s{sp}, s{sp}, s6")
        a(f"s_add_u32 s{sp}, s{sp}, {WS_OUTP}")

    def outp_store(self, va, sp, q0, q1, q2, tag):
        a = self.a
        a(f"buffer_store_dwordx4 {vr(q0,4)}, v{va}, {WS}, s{sp} offen sc1", tag)
        a(f"buffer_store_dwordx4 {vr(q1,4)}, v{va}, {WS}, s{sp} offen offset:1024 sc1", tag)
        a(f"buffer_store_dword v{q2}, v{va+1}, {WS}, s{sp} offen offset:2048 sc1", tag)

    def outp_clear(self, va, sp, vq):
        a = self.a
        for k in range(4):
            a(f"v_mov_b32 v{vq+k}, -1")
        self.outp_store(va, sp, vq, vq, vq, "clr")

    def notice(self, sp, vq):
        a = self.a
        a(f"v_mov_b32 v{vq}, s4\nv_mov_b32 v{vq+1}, s5\nv_mov_b32 v{vq+2}, s4\nv_mov_b32 v{vq+3}, s5")
        a("s_mov_b64 exec, 1")
        a(f"buffer_store_dwordx4 {vr(vq,4)}, off, {WS}, s{sp+1} sc1", "note")
        a("s_mov_b64 exec, -1")

    def dense_out(self, vA, nks, vacc, va, sp):
        a = self.a
        for ks in range(nks):
            for cb in range(9):
                c = "0" if ks == 0 else vr(vacc + 4*cb, 4)
                a(f"v_mfma_f32_16x16x32_bf16 {vr(vacc+4*cb,4)}, {vr(vA+4*ks,4)}, {ar((ks*9+cb)*4,4)}, {c}")
        q = vacc + 36
        for grp in ((0, 1, 2, 3), (4, 5, 6, 7), (8,)):
            for cb in grp:
                a(f"v_add_f32 v{vacc+4*cb}, v{vacc+4*cb}, v{vacc+4*cb+1}")
                a(f"v_add_f32 v{vacc+4*cb+2}, v{vacc+4*cb+2}, v{vacc+4*cb+3}")
            for cb in grp:
                a(f"v_add_f32 v{q+cb}, v{vacc+4*cb}, v{vacc+4*cb+2}")
            if grp[0] == 0:
                a(f"buffer_store_dwordx4 {vr(q,4)}, v{va}, {WS}, s{sp} offen sc1")
            elif grp[0] == 4:
                a(f"buffer_store_dwordx4 {vr(q+4,4)}, v{va}, {WS}, s{sp} offen offset:1024 sc1")
            else:
                a(f"buffer_store_dword v{q+8}, v{va+1}, {WS}, s{sp} offen offset:2048 sc1")

    def preamble(self):
        a = self.a
        self.stamp(0)
        if self.o["diag"]:
            a("s_memtime s[92:93]")
        a(f"s_cmp_ge_u32 s2, {NWG}")
        a("s_cbranch_scc1 L_end")
        self.srd(36, 96, WS_SIZE)
        self.srd(40, 0, 4608)
        a("v_and_b32 v1, 63, v0")
        a("v_lshrrev_b32 v2, 6, v0")
        if self.o["prefetch"]:
            a("s_getpc_b64 s[60:61]")
            a.label("L_pc")
            a("v_lshlrev_b32 v3, 7, v0")
            a("v_min_u32 v3, L_codeend-L_pc-4, v3")
            a("v_readfirstlane_b32 s3, v2")
            a("global_load_dword v255, v3, s[60:61]", "pf")
        else:
            a("v_readfirstlane_b32 s3, v2")
        a(f"s_cmp_ge_u32 s2, {WG_FFN}")
        a("s_cbranch_scc1 L_notatt")

    def att(self):
        a, o = self.a, self.o
        nt = o["nt"]
        STG = 131072
        XN, RED = STG, STG + 10240
        MX, LX, PX, AL, LAT = 32768, 32768 + 512, 32768 + 1024, 32768 + 1024 + 8192, 32768 + 1024 + 8192 + 512
        self.srd(44, 16, 576 * 8192)
        self.srd(48, 8, 4 * 4096 * 1024)
        self.srd(52, 32, 512 * 8192)
        a("s_and_b32 s8, s2, 31\ns_lshr_b32 s9, s2, 5")
        a("s_bfe_u32 s10, s2, 0x20001")
        a("s_lshr_b32 s11, s2, 3\ns_lshl_b32 s11, s11, 1\ns_and_b32 s6, s2, 1\ns_or_b32 s11, s11, s6")
        VM, VG, VL = 10, 14, 15
        a(f"v_lshrrev_b32 v{VG}, 4, v1\nv_and_b32 v{VL}, 15, v1")
        a("s_lshl_b32 s6, s3, 2")
        a(f"v_add_u32 v5, s6, v{VG}")
        a(f"v_mul_u32_u24 v4, {9*8192}, v5")
        a(f"v_lshl_add_u32 v4, v{VL}, 4, v4")
        a(f"s_mul_i32 s12, s9, {144*8192}\ns_lshl_b32 s6, s8, 8\ns_add_u32 s12, s12, s6")
        a(f"v_lshl_or_b32 v6, v{VG}, 2, s3")
        a(f"v_xor_b32 v6, v6, v{VL}")
        a("v_lshlrev_b32 v6, 4, v6")
        a(f"v_lshl_add_u32 v6, v{VG}, 10, v6")
        a("s_lshl_b32 s6, s3, 12")
        a("v_add_u32 v6, s6, v6")
        a("s_lshl_b32 s13, s10, 22\ns_lshl_b32 s6, s11, 17\ns_add_u32 s13, s13, s6")
        a("s_lshl_b32 s14, s3, 10")
        VE, VX, VW, VXN, VA, VACC, VT = 8, 152, 16, 52, 72, 144, 160
        a("s_waitcnt lgkmcnt(0)")
        self.load_epoch_x(VE, VX)
        for t in range(9):
            if t:
                a("s_add_u32 s12, s12, 8192")
            a(f"buffer_load_dwordx4 {vr(VW+4*t,4)}, v4, {SA}, s12 offen {nt}", f"wq{t}")
        def ckv(cq, ms):
            for m in ms:
                a(f"s_add_u32 m0, s14, {cq*32768 + m*4096}")
                a(f"s_add_u32 s6, s13, {m*16384 + cq*256}")
                a(f"buffer_load_dwordx4 v6, {SB}, s6 offen {nt} lds", f"q{cq}")
        ckv(0, range(o["q0a"]))
        self.masks(VM)
        a("v_bfe_u32 v2, v1, 3, 1")
        a("v_mul_u32_u24 v2, 2304, v2")
        a("v_mul_u32_u24 v3, 36, v5")
        a("v_add_u32 v2, v2, v3")
        a(f"s_mul_i32 s6, s9, 576\ns_add_u32 s6, s6, {XN}")
        a("v_add_u32 v7, s6, v2")
        a("v_add_u32 v5, 4608, v7")
        a.wait_vm("x")
        self.stamp(1)
        self.get_tag(VE)
        self.layernorm(VX, VT, XN)
        a("s_waitcnt lgkmcnt(0)")
        a("s_barrier")
        for ch, ad in ((0, 7), (1, 5)):
            for k in range(4):
                a(f"ds_read2_b32 {vr(VXN+10*ch+2*k,2)}, v{ad} offset0:{2*k} offset1:{2*k+1}")
            a(f"ds_read_b32 v{VXN+10*ch+8}, v{ad} offset:32")
        ckv(0, range(o["q0a"], 8))
        a("s_waitcnt lgkmcnt(0)")
        for t in range(9):
            for ch in range(2):
                for r in range(4):
                    a(f"v_and_b32 v{VA+(2*t+ch)*4+r}, v{VXN+10*ch+t}, v{VM+r}")
        a(f"s_lshl_b32 s6, s3, 11\ns_add_u32 s6, s6, {RED}")
        a("v_lshl_add_u32 v2, v1, 4, s6")
        a(f"s_lshl_b32 s6, s3, 10\ns_add_u32 s6, s6, {RED}")
        a("v_lshl_add_u32 v3, v1, 4, s6")
        a("s_lshl_b32 s15, s8, 2\ns_add_u32 s15, s15, s9\ns_lshl_b32 s15, s15, 11\ns_add_u32 s15, s15, s14")
        a(f"s_add_u32 s15, s15, {WS_QP}")
        a("v_lshrrev_b32 v5, 5, v1")
        a("v_lshlrev_b32 v5, 9, v5")
        a(f"v_lshl_add_u32 v5, v{VL}, 5, v5")
        a(f"v_and_b32 v7, 1, v{VG}")
        a("v_lshl_add_u32 v5, v7, 4, v5")
        for t in range(9):
            a.wait_vm(f"wq{t}")
            for ch in range(2):
                c = "0" if t == 0 else vr(VACC + 4*ch, 4)
                a(f"v_mfma_f32_16x16x32_bf16 {vr(VACC+4*ch,4)}, {vr(VA+(2*t+ch)*4,4)}, {vr(VW+4*t,4)}, {c}")
        self.stamp(2)
        a(f"ds_write_b128 v2, {vr(VACC,4)}")
        a(f"ds_write_b128 v2, {vr(VACC+4,4)} offset:1024")
        a("s_waitcnt lgkmcnt(0)")
        a("s_barrier")
        a("s_cmp_ge_u32 s3, 2")
        a("s_cbranch_scc1 L_att_noqp")
        for k in range(4):
            a(f"ds_read_b128 {vr(16+4*k,4)}, v3 offset:{2048*k}")
        a("v_mov_b32 v34, s4\nv_mov_b32 v35, s5")
        a("s_waitcnt lgkmcnt(0)")
        for r in range(4):
            a(f"v_add_f32 v{16+r}, v{16+r}, v{20+r}")
            a(f"v_add_f32 v{24+r}, v{24+r}, v{28+r}")
        for r in range(4):
            a(f"v_add_f32 v{16+r}, v{16+r}, v{24+r}")
        a("v_cvt_pk_bf16_f32 v32, v16, v17")
        a("v_cvt_pk_bf16_f32 v33, v18, v19")
        a(f"buffer_store_dwordx4 v[32:35], v5, {WS}, s15 offen sc1", "-")
        a.label("L_att_noqp")
        self.stamp(3)
        ckv(1, range(8))
        ckv(2, range(8))
        VQK, VTR, VQB, VSG, VOP = 176, 184, 186, 194, 202
        a("v_and_b32 v2, 3, v1")
        a("v_lshlrev_b32 v2, 2, v2")
        a("v_bfe_u32 v3, v1, 2, 2")
        a("v_or_b32 v2, v2, v3")
        a("v_lshrrev_b32 v3, 5, v1")
        a("v_xor_b32 v2, v2, v3")
        a("v_lshlrev_b32 v2, 4, v2")
        a("v_and_b32 v3, 31, v1")
        a("v_lshl_add_u32 v2, v3, 8, v2")
        a("s_lshl_b32 s6, s3, 13")
        a(f"v_add_u32 v{VQK}, s6, v2")
        for k in range(1, 8):
            a(f"v_xor_b32 v{VQK+k}, {32*k}, v{VQK}")
        a("v_bfe_u32 v2, v1, 2, 2")
        a("v_lshrrev_b32 v3, 5, v1")
        a("v_lshl_add_u32 v7, v3, 2, v2")
        a("v_lshl_or_b32 v2, v2, 2, v3")
        a("v_bfe_u32 v3, v1, 4, 1")
        a("v_lshlrev_b32 v3, 1, v3")
        a("v_bfe_u32 v5, v1, 1, 1")
        a("v_or_b32 v3, v3, v5")
        a("s_lshl_b32 s6, s3, 2")
        a("v_or_b32 v3, s6, v3")
        a("v_xor_b32 v2, v2, v3")
        a("v_lshlrev_b32 v2, 4, v2")
        a("v_lshl_add_u32 v2, v7, 8, v2")
        a("v_and_b32 v3, 1, v1")
        a(f"v_lshl_add_u32 v{VTR}, v3, 3, v2")
        a(f"v_xor_b32 v{VTR+1}, 32, v{VTR}")
        a("v_lshrrev_b32 v3, 5, v1")
        a(f"v_xor_b32 v2, v3, v{VL}")
        a("v_lshlrev_b32 v2, 4, v2")
        a("v_and_b32 v3, 31, v1")
        a("v_lshl_add_u32 v2, v3, 10, v2")
        a(f"v_add_u32 v{VQB}, {STG}, v2")
        for k in range(1, 8):
            a(f"v_xor_b32 v{VQB+k}, {32*k}, v{VQB}")
        a("s_and_b32 s6, s3, 1\ns_lshl_b32 s6, s6, 7")
        a("v_lshlrev_b32 v2, 3, v1")
        a("v_xor_b32 v2, s6, v2")
        a(f"s_lshl_b32 s6, s3, 13\ns_add_u32 s6, s6, {STG}")
        a(f"v_add_u32 v{VSG}, s6, v2")
        for k in range(1, 8):
            a(f"v_xor_b32 v{VSG+k}, {16*k}, v{VSG}")
        a("v_lshrrev_b32 v2, 5, v1")
        a("v_lshlrev_b32 v2, 2, v2")
        a("v_bfe_u32 v3, v1, 4, 1")
        a("v_or_b32 v2, v2, v3")
        a("v_lshlrev_b32 v2, 17, v2")
        a(f"v_lshl_add_u32 v{VOP}, v{VL}, 4, v2")
        a("s_lshl_b32 s16, s3, 15\ns_lshl_b32 s6, s10, 13\ns_add_u32 s16, s16, s6\ns_lshl_b32 s6, s11, 8\ns_add_u32 s16, s16, s6")
        a(f"s_add_u32 s16, s16, {WS_OP}")
        a("s_lshl_b32 s17, s10, 16\ns_lshl_b32 s6, s3, 14\ns_add_u32 s17, s17, s6")
        a(f"s_add_u32 s17, s17, {WS_QA}")
        VL16 = 203
        a(f"v_lshlrev_b32 v{VL16}, 4, v1")
        VUV = 204
        a("s_and_b32 s6, s3, 1\ns_lshl_b32 s7, s6, 2")
        a(f"v_or_b32 v2, s7, v{VG}")
        a("v_bfe_u32 v3, v1, 1, 3")
        a("v_xor_b32 v2, v2, v3")
        a("v_lshlrev_b32 v2, 5, v2")
        a(f"v_lshl_add_u32 v2, v{VG}, 20, v2")
        a("v_and_b32 v3, 1, v1")
        a(f"v_lshl_add_u32 v{VUV}, v3, 4, v2")
        a("s_lshr_b32 s7, s3, 1")
        a("s_lshl_b32 s19, s6, 1\ns_add_u32 s19, s19, s7\ns_lshl_b32 s19, s19, 10")
        a("s_lshl_b32 s18, s7, 4\ns_add_u32 s18, s18, s6\ns_lshl_b32 s7, s9, 5\ns_add_u32 s18, s18, s7\ns_lshl_b32 s18, s18, 13")
        a("s_lshl_b32 s6, s8, 8\ns_add_u32 s18, s18, s6")

        def rdq(cq):
            a.wait_vm(f"q{cq}", "lgkmcnt(0)")
            a("s_barrier")
            if cq == 2:
                for k in range(8):
                    a(f"v_add_u32 v{VQK+k}, 0x10000, v{VQK+k}")
                a(f"v_add_u32 v{VTR}, 0x10000, v{VTR}\nv_add_u32 v{VTR+1}, 0x10000, v{VTR+1}")
            for k in range(8):
                a(f"ds_read_b128 {ar((cq*8+k)*4,4)}, v{VQK+k} offset:{(cq%2)*32768}")
            for u in range(8):
                for hf in range(2):
                    a(f"ds_read_b64_tr_b16 {ar(128+(cq*8+u)*4+2*hf,2)}, v{VTR+hf} offset:{(cq%2)*32768 + u*4096 + hf*2048}")
        def op_store(u, q, tag):
            a(f"s_add_u32 s6, s16, {(8*(u//2) + 2*(u%2))*131072}")
            a(f"buffer_store_dwordx4 {vr(q,4)}, v{VOP}, {WS}, s6 offen sc1", tag)
        rdq(0)
        ckv(3, range(8))
        rdq(1)
        for k in range(4):
            a(f"v_mov_b32 v{208+k}, -1")
        for u in range(8):
            op_store(u, 208, "clr")
        VQG = 16
        def qa_issue(j, tag):
            if j % 4 == 0 or tag == "-":
                a(f"s_add_u32 s6, s17, {(j//4)*4096}")
            a(f"buffer_load_dwordx4 {vr(VQG+4*j,4)}, v{VL16}, {WS}, s6 offen offset:{(j%4)*1024} sc1", tag)
        for j in range(16):
            qa_issue(j, f"qa{j}")
        rdq(2)
        for m in range(8):
            a(f"s_add_u32 m0, s19, {m*4096}")
            a(f"s_add_u32 s6, s18, {m*16384}")
            a(f"buffer_load_dwordx4 v{VUV}, {SC}, s6 offen {nt} lds", "uv")
        rdq(3)
        self.stamp(4)
        def qa_check(j):
            a(f"v_cmp_ne_u64 vcc, s[4:5], {vr(VQG+4*j+2,2)}")
        def qa_act(j):
            a(f"ds_write_b64 v{VSG+j//2}, {vr(VQG+4*j,2)} offset:{(j//2)*1024 + (j%2)*512}")
        self.poll_group("qa", 16, qa_issue, qa_check, qa_act, [f"qa{j}" for j in range(16)])
        a("s_waitcnt lgkmcnt(0)")
        a("s_barrier")
        self.stamp(5)
        VB, VS = 16, 144
        for ks in range(32):
            a(f"ds_read_b128 {vr(VB+4*ks,4)}, v{VQB+ks%8} offset:{(ks//8)*256}")
            if ks >= 8:
                k2 = ks - 8
                a("s_waitcnt lgkmcnt(8)")
                c = "0" if k2 == 0 else vr(VS, 16)
                a(f"v_mfma_f32_32x32x16_bf16 {vr(VS,16)}, {ar(4*k2,4)}, {vr(VB+4*k2,4)}, {c}")
        for k2 in range(24, 32):
            a(f"s_waitcnt lgkmcnt({31-k2})")
            a(f"v_mfma_f32_32x32x16_bf16 {vr(VS,16)}, {ar(4*k2,4)}, {vr(VB+4*k2,4)}, {vr(VS,16)}")
        a("v_and_b32 v5, 31, v1")
        a("v_lshlrev_b32 v5, 4, v5")
        a(f"v_add_u32 v5, {MX}, v5")
        a("s_lshl_b32 s6, s3, 2")
        a("v_add_u32 v4, s6, v5")
        a(f"v_add_u32 v7, {PX}, v{VL16}")
        a("s_lshl_b32 s6, s3, 11")
        a("v_add_u32 v6, s6, v7")
        a("s_lshl_b32 s20, s10, 5\ns_add_u32 s20, s20, s11\ns_lshl_b32 s20, s20, 4")
        a(f"s_add_u32 s20, s20, {WS_ML}")
        a("v_lshlrev_b32 v9, 11, v1")
        a(f"v_max3_f32 v2, v{VS}, v{VS+1}, v{VS+2}")
        a(f"v_max3_f32 v3, v{VS+3}, v{VS+4}, v{VS+5}")
        for k in range(6, 14, 4):
            a(f"v_max3_f32 v2, v2, v{VS+k}, v{VS+k+1}")
            a(f"v_max3_f32 v3, v3, v{VS+k+2}, v{VS+k+3}")
        a(f"v_max3_f32 v2, v2, v{VS+14}, v{VS+15}")
        a("v_max_f32 v2, v2, v3")
        a("v_mov_b32 v3, v2")
        a("v_permlane32_swap_b32 v2, v3")
        a("v_max_f32 v2, v2, v3")
        a("ds_write_b32 v4, v2")
        a("s_waitcnt lgkmcnt(0)")
        a("s_barrier")
        a("ds_read_b128 v[16:19], v5")
        a("s_waitcnt lgkmcnt(0)")
        VMX = 160
        a("v_max3_f32 v2, v16, v17, v18")
        a(f"v_max_f32 v{VMX}, v2, v19")
        for k in range(16):
            a(f"v_sub_f32 v{VS+k}, v{VS+k}, v{VMX}")
        for k in range(16):
            a(f"v_exp_f32 v{VS+k}, v{VS+k}")
        for k in range(8):
            a(f"v_cvt_pk_bf16_f32 v{16+k}, v{VS+2*k}, v{VS+2*k+1}")
        a("ds_write_b128 v6, v[16:19]")
        a("ds_write_b128 v6, v[20:23] offset:1024")
        for k in range(4):
            a(f"v_pk_add_f32 {vr(VS+2*k,2)}, {vr(VS+2*k,2)}, {vr(VS+8+2*k,2)}")
        for k in range(2):
            a(f"v_pk_add_f32 {vr(VS+2*k,2)}, {vr(VS+2*k,2)}, {vr(VS+4+2*k,2)}")
        a(f"v_pk_add_f32 {vr(VS,2)}, {vr(VS,2)}, {vr(VS+2,2)}")
        a(f"v_add_f32 v2, v{VS}, v{VS+1}")
        a("v_mov_b32 v3, v2")
        a("v_permlane32_swap_b32 v2, v3")
        a("v_add_f32 v2, v2, v3")
        a("ds_write_b32 v4, v2 offset:512")
        a("s_waitcnt lgkmcnt(0)")
        a("s_barrier")
        self.stamp(6)
        VP, VO = 16, 48
        for u in range(8):
            a(f"ds_read_b128 {vr(VP+4*u,4)}, v7 offset:{1024*u}")
        a("ds_read_b128 v[164:167], v5 offset:512")
        def pv(cq, u):
            c = "0" if u == 0 else vr(VO + 16*cq, 16)
            a(f"v_mfma_f32_32x32x16_bf16 {vr(VO+16*cq,16)}, {vr(VP+4*u,4)}, {ar(128+(cq*8+u)*4,4)}, {c}")
        for u in range(8):
            a(f"s_waitcnt lgkmcnt({8-u})")
            pv(0, u); pv(1, u)
            if u == 1:
                a("s_waitcnt lgkmcnt(0)")
                a("v_add_f32 v164, v164, v165")
                a("v_add_f32 v166, v166, v167")
                a(f"v_add_f32 v{VMX+1}, v164, v166")
                a(f"v_mov_b32 v{VMX+2}, s4\nv_mov_b32 v{VMX+3}, s5")
                a("s_cmp_lg_u32 s3, 0")
                a("s_cbranch_scc1 L_att_noml")
                a("s_mov_b64 exec, 0xffffffff")
                a(f"buffer_store_dwordx4 {vr(VMX,4)}, v9, {WS}, s20 offen sc1", "-")
                a("s_mov_b64 exec, -1")
                a.label("L_att_noml")
        VQ = 112
        for u in range(8):
            pv(2, u); pv(3, u)
            if u >= 2:
                lo, hi = (u-2)*16//6, (u-1)*16//6
                for r in range(lo, hi):
                    a(f"v_cvt_pk_bf16_f32 v{VQ+4*(r//2)+2*(r%2)}, v{VO+r}, v{VO+16+r}")
        for u in range(8):
            for r in (2*u, 2*u+1):
                a(f"v_cvt_pk_bf16_f32 v{VQ+4*(r//2)+2*(r%2)+1}, v{VO+32+r}, v{VO+48+r}")
            a(f"v_permlane16_swap_b32 v{VQ+4*u}, v{VQ+4*u+2}")
            a(f"v_permlane16_swap_b32 v{VQ+4*u+1}, v{VQ+4*u+3}")
            op_store(u, VQ + 4*u, "o")
        self.stamp(7)
        a.wait_vm("uv")
        a("s_barrier")
        a("s_lshl_b32 s21, s8, 2\ns_add_u32 s21, s21, s3\ns_lshl_b32 s21, s21, 9")
        a(f"s_add_u32 s21, s21, {WS_ML}")
        a("v_and_b32 v2, 31, v1")
        a("v_lshlrev_b32 v4, 4, v2")
        def ml_issue(j, tag):
            a(f"buffer_load_dwordx4 v[16:19], v4, {WS}, s21 offen sc1", tag)
        ml_issue(0, "ml0")
        a("v_bfe_u32 v3, v1, 2, 2")
        a(f"v_lshl_add_u32 v5, v{VG}, 3, v3")
        a(f"v_and_b32 v6, 1, v{VG}")
        a("v_lshl_or_b32 v3, v6, 2, v3")
        a("s_lshl_b32 s6, s3, 1")
        a("v_xor_b32 v3, s6, v3")
        a("v_lshlrev_b32 v3, 5, v3")
        a("v_lshl_add_u32 v5, v5, 8, v3")
        a("v_and_b32 v3, 3, v1")
        a("v_lshl_add_u32 v5, v3, 3, v5")
        a("v_xor_b32 v6, 32, v5")
        VU = 48
        for tt in range(2):
            for ks in range(4):
                for hf in range(2):
                    a(f"ds_read_b64_tr_b16 {vr(VU+(tt*4+ks)*4+2*hf,2)}, v{5+tt} offset:{ks*8192+hf*1024}")
        a("v_and_b32 v3, 3, v1")
        a("v_lshlrev_b32 v3, 3, v3")
        a("v_bfe_u32 v7, v1, 2, 3")
        a("v_add_u32 v3, v3, v7")
        a(f"s_lshl_b32 s6, s3, 7\ns_add_u32 s6, s6, {AL}")
        a("v_lshl_add_u32 v7, v3, 2, s6")
        a(f"v_lshl_add_u32 v9, v{VG}, 5, s6")
        a("s_lshl_b32 s22, s8, 17\ns_lshl_b32 s6, s9, 15\ns_add_u32 s22, s22, s6\ns_lshl_b32 s6, s3, 13\ns_add_u32 s22, s22, s6")
        a(f"s_add_u32 s22, s22, {WS_OP}")
        a("s_add_u32 s23, s22, 4096")
        a(f"v_and_b32 v3, 1, v{VG}")
        a("v_lshlrev_b32 v3, 3, v3")
        a(f"v_lshl_add_u32 v3, v{VL}, 4, v3")
        a(f"s_lshl_b32 s6, s3, 8\ns_add_u32 s6, s6, {LAT}")
        a("v_add_u32 v205, s6, v3")
        a("v_bfe_u32 v3, v1, 2, 2")
        a("v_lshlrev_b32 v3, 8, v3")
        a(f"v_lshl_add_u32 v3, v{VG}, 4, v3")
        a(f"v_add_u32 v206, {LAT}, v3")
        a("s_lshl_b32 s24, s8, 2\ns_add_u32 s24, s24, s9\ns_lshl_b32 s24, s24, 11\ns_lshl_b32 s6, s3, 7\ns_add_u32 s24, s24, s6")
        a(f"s_add_u32 s24, s24, {WS_CX}")
        a("v_bfe_u32 v3, v1, 2, 2")
        a("v_lshlrev_b32 v3, 9, v3")
        a(f"v_lshl_add_u32 v3, v{VG}, 4, v3")
        a("v_and_b32 v2, 1, v1")
        a("v_lshl_add_u32 v207, v2, 6, v3")
        self.poll_group("ml", 1, ml_issue, lambda j: a("v_cmp_ne_u64 vcc, s[4:5], v[18:19]"), lambda j: None, ["ml0"])
        self.stamp(8)
        VOD = 80
        def op_issue(j, tag):
            a(f"buffer_load_dwordx4 {vr(VOD+4*j,4)}, v{VL16}, {WS}, s{22+j//4} offen offset:{(j%4)*1024} sc1", tag)
        a.vm_reset()
        for j in range(8):
            op_issue(j, f"op{j}")
        a("v_mov_b32 v20, v16")
        self.allreduce([20], [21], "v_max_f32", False)
        a("v_sub_f32 v20, v16, v20")
        a("v_exp_f32 v20, v20")
        a("v_mul_f32 v22, v20, v17")
        self.allreduce([22], [21], "v_add_f32", False)
        a("v_rcp_f32 v22, v22")
        a("v_mul_f32 v20, v20, v22")
        a("v_cvt_pk_bf16_f32 v20, v20, v20")
        a("ds_write_b32 v7, v20")
        a("s_waitcnt lgkmcnt(0)")
        a("ds_read_b128 v[16:19], v9")
        a("ds_read_b128 v[20:23], v9 offset:16")
        a("s_waitcnt lgkmcnt(0)")
        VSA = 112
        for t in range(8):
            for r in range(4):
                a(f"v_and_b32 v{VSA+4*t+r}, v{16+t}, v{VM+r}")
        self.poll_group("op", 8, op_issue, lambda j: a(f"v_cmp_eq_u32 vcc, -1, v{VOD+4*j}"), lambda j: None,
                        [f"op{j}" for j in range(8)])
        self.stamp(9)
        for t in range(8):
            c = "0" if t == 0 else "v[24:27]"
            a(f"v_mfma_f32_16x16x32_bf16 v[24:27], {vr(VSA+4*t,4)}, {vr(VOD+4*t,4)}, {c}")
        a("v_mov_b32 v42, s4\nv_mov_b32 v43, s5")
        a("v_cmp_eq_u32 vcc, 1, v2")
        a("v_cvt_pk_bf16_f32 v28, v24, v25")
        a("v_cvt_pk_bf16_f32 v29, v26, v27")
        a("ds_write_b64 v205, v[28:29]")
        a("s_waitcnt lgkmcnt(0)")
        a("s_barrier")
        for ks in range(4):
            a(f"ds_read_b128 {vr(144+4*ks,4)}, v206 offset:{64*ks}")
        for ks in range(4):
            a(f"s_waitcnt lgkmcnt({3-ks})")
            for tt in range(2):
                c = "0" if ks == 0 else vr(32+4*tt, 4)
                a(f"v_mfma_f32_16x16x32_bf16 {vr(32+4*tt,4)}, {vr(VU+(tt*4+ks)*4,4)}, {vr(144+4*ks,4)}, {c}")
        a("v_cvt_pk_bf16_f32 v28, v32, v33")
        a("v_cvt_pk_bf16_f32 v29, v34, v35")
        a("v_cvt_pk_bf16_f32 v30, v36, v37")
        a("v_cvt_pk_bf16_f32 v31, v38, v39")
        a("v_cndmask_b32 v40, v28, v30, vcc")
        a("v_cndmask_b32 v41, v29, v31, vcc")
        a("s_mov_b32 s6, 0x33333333\ns_mov_b32 exec_lo, s6\ns_mov_b32 exec_hi, s6")
        a(f"buffer_store_dwordx4 v[40:43], v207, {WS}, s24 offen sc1")
        self.stamp(10)
        self.stamps_out((0, [(0,0),(1,1),(3,2),(4,3),(5,4),(7,5),(9,6),(10,7),(15,15)]))
        a("s_endpgm")

    def ffn(self):
        a, o = self.a, self.o
        nt = o["nt"]
        a.vm_reset()
        UK, XN, ASTG, RED = 73728, 73728 + 65536, 73728 + 65536 + 9216, 73728
        self.srd(44, 24, 512 * 8192)
        self.srd(48, 72, 4608 * 1152)
        a("s_load_dwordx4 s[96:99], s[0:1], 56")
        a(f"s_sub_u32 s8, s2, {WG_FFN}")
        VM, VG, VL = 10, 14, 15
        a(f"v_lshrrev_b32 v{VG}, 4, v1\nv_and_b32 v{VL}, 15, v1")
        VOA, VE, VX, VT, VQ = 4, 8, 152, 160, 16
        a("s_mov_b32 s26, s8")
        self.outp_addr(VOA, 26)
        a("s_lshr_b32 s10, s8, 1")
        a("s_and_b32 s6, s8, 1\ns_lshl_b32 s6, s6, 2\ns_add_u32 s11, s6, s3")
        a("s_lshl_b32 s9, s11, 19\ns_lshl_b32 s6, s10, 8\ns_add_u32 s9, s9, s6")
        a(f"v_lshlrev_b32 v6, 13, v{VG}")
        a(f"v_lshl_add_u32 v6, v{VL}, 4, v6")
        a(f"s_lshl_b32 s12, s3, 14\ns_add_u32 s12, s12, {UK}")
        a("s_waitcnt lgkmcnt(0)")
        self.load_epoch_x(VE, VX)
        self.outp_clear(VOA, 26, VQ)
        a("s_cmp_ge_u32 s8, 64")
        a("s_cbranch_scc1 L_ffn_nouk")
        for t in range(16):
            a(f"v_xor_b32 v7, {16*t}, v6")
            a(f"s_add_u32 m0, s12, {t*1024}")
            a(f"s_add_u32 s6, s9, {t*4*8192}")
            a(f"buffer_load_dwordx4 v7, {SA}, s6 offen {nt} lds", "uk")
        a("s_waitcnt vmcnt(19)")
        a("s_branch L_ffn_ln")
        a.label("L_ffn_nouk")
        a("s_waitcnt vmcnt(3)")
        a.label("L_ffn_ln")
        self.stamp(1)
        self.get_tag(VE)
        self.layernorm(VX, VT, XN)
        self.masks(VM)
        VSA = 20
        self.stage_addr(VSA, ASTG)
        VWD, VWT = 23, 24
        self.w_dma_setup(VWD)
        self.w_tr_addr(VWT)
        a("s_mul_i32 s29, s3, 9216")
        a(f"s_mul_i32 s28, s8, {64*1152}\ns_add_u32 s28, s28, s29")
        a("s_lshl_b32 s6, s3, 2")
        a(f"v_add_u32 v28, s6, v{VG}")
        a(f"v_mul_u32_u24 v2, {36*9216}, v28")
        a("v_and_b32 v3, 7, v1")
        a("v_lshl_add_u32 v2, v3, 4, v2")
        a("s_lshl_b32 s6, s8, 7")
        a("v_add_u32 v2, s6, v2")
        a("v_mov_b32 v3, 0")
        a(f"v_cmp_gt_u32 vcc, 8, v{VL}")
        a("v_mov_b32 v26, s98\nv_mov_b32 v27, s99\nv_mov_b32 v29, s96\nv_mov_b32 v30, s97")
        a("v_cndmask_b32 v26, v26, v29, vcc")
        a("v_cndmask_b32 v27, v27, v30, vcc")
        a("v_lshl_add_u64 v[26:27], v[2:3], 0, v[26:27]")
        a("s_mov_b32 s30, 9216\ns_mov_b32 s31, 0")
        a("v_mul_u32_u24 v28, 144, v28")
        a("v_bfe_u32 v2, v1, 3, 1")
        a("v_mul_u32_u24 v2, 2304, v2")
        a(f"v_add3_u32 v28, v28, v2, {XN}" if False else f"v_add_u32 v28, v28, v2\nv_add_u32 v28, {XN}, v28")
        a("s_waitcnt lgkmcnt(0)")
        a("s_barrier")
        VXN = 176
        for ch in range(2):
            for k in range(9):
                a(f"ds_read_b128 {vr(VXN+36*ch+4*k,4)}, v28 offset:{ch*4608+16*k}")
        a("s_cmp_ge_u32 s8, 64")
        a("s_cbranch_scc1 L_ffn_noqa")
        a("s_waitcnt vmcnt(16)")
        self.notice(26, VQ)
        a(f"v_xor_b32 v2, v{VG}, v{VL}")
        a("v_lshlrev_b32 v2, 4, v2")
        a(f"v_lshl_add_u32 v2, v{VL}, 10, v2")
        a("v_add_u32 v32, s12, v2")
        for ks in range(1, 4):
            a(f"v_xor_b32 v{32+ks}, {64*ks}, v32")
        a(f"s_lshl_b32 s13, s10, 13\ns_add_u32 s13, s13, {WS_QP}")
        a("s_lshl_b32 s14, s10, 11\ns_lshl_b32 s6, s11, 8\ns_add_u32 s14, s14, s6")
        a(f"s_add_u32 s14, s14, {WS_QA}")
        a(f"v_lshlrev_b32 v36, 16, v{VG}")
        a(f"v_lshl_add_u32 v36, v{VL}, 4, v36")
        a("s_waitcnt vmcnt(1)")
        self.stamp(2)
        for tt in range(4):
            for ks in range(4):
                a(f"ds_read_b128 {ar((tt*4+ks)*4,4)}, v{32+ks} offset:{tt*256}")
        a.vm_reset()
        self.stage_partials("qp", 13, 40, VSA, ASTG, 48)
        self.stamp(3)
        a("v_mov_b32 v86, s4\nv_mov_b32 v87, s5")
        for ks in range(4):
            a(f"s_waitcnt lgkmcnt({3-ks})")
            for tt in range(4):
                c = "0" if ks == 0 else vr(64+4*tt, 4)
                a(f"v_mfma_f32_16x16x32_bf16 {vr(64+4*tt,4)}, {vr(48+4*ks,4)}, {ar((tt*4+ks)*4,4)}, {c}")
        sc = f2u(128 ** -0.5 * math.log2(math.e))
        for tt in range(4):
            a(f"v_add_f32 v{64+4*tt}, v{64+4*tt}, v{65+4*tt}")
            a(f"v_add_f32 v{66+4*tt}, v{66+4*tt}, v{67+4*tt}")
        for tt in range(4):
            a(f"v_add_f32 v{80+tt}, v{64+4*tt}, v{66+4*tt}")
        for tt in range(4):
            a(f"v_mul_f32 v{80+tt}, {sc}, v{80+tt}")
        a("v_cvt_pk_bf16_f32 v84, v80, v81")
        a("v_cvt_pk_bf16_f32 v85, v82, v83")
        a(f"buffer_store_dwordx4 v[84:87], v36, {WS}, s14 offen sc1")
        a("s_branch L_ffn_main")
        a.label("L_ffn_noqa")
        a("s_waitcnt vmcnt(0)")
        self.notice(26, VQ)
        a.label("L_ffn_main")
        self.stamp(4)
        a.vm_reset()
        for m in range(2):
            self.w_dma_issue(VWD, SB, 28, m, "w2")
        VW = 32
        D = o["ffn_depth"]
        def ld(t):
            a(f"global_load_dwordx4 {vr(VW+4*t,4)}, v[26:27], off {nt}", f"w{t}")
            if t < 35:
                a("v_lshl_add_u64 v[26:27], v[26:27], 0, s[30:31]")
        for t in range(D):
            ld(t)
        AA = 128
        VA0 = (248, 252)
        VACC = 16
        VACC2 = 6
        acc = (16, 20)
        acc = (16, 28)
        for t in range(36):
            for ch in range(2):
                if t == 0 and ch == 0:
                    a("s_waitcnt lgkmcnt(0)")
                for r in range(4):
                    a(f"v_and_b32 v{VA0[ch]+r}, v{VXN+36*ch+t}, v{VM+r}")
                if ch == 0:
                    a.wait_vm(f"w{t}")
                    if t == 0:
                        a("s_barrier")
                        self.w_tr_reads(VWT, 2)
                c = "0" if t == 0 else vr(acc[ch], 4)
                a(f"v_mfma_f32_16x16x32_bf16 {vr(acc[ch],4)}, {vr(VA0[ch],4)}, {vr(VW+4*t,4)}, {c}")
            if t + D < 36:
                ld(t + D)
            if t == 30:
                a(f"s_lshl_b32 s6, s3, 11\ns_add_u32 s6, s6, {RED}")
                a("v_lshl_add_u32 v20, v1, 4, s6")
                a("v_bfe_u32 v2, v1, 2, 2")
                a("v_lshlrev_b32 v2, 9, v2")
                a("v_and_b32 v3, 1, v1")
                a("v_lshl_add_u32 v2, v3, 8, v2")
                a("v_bfe_u32 v3, v1, 1, 1")
                a("v_lshl_add_u32 v2, v3, 6, v2")
                a(f"v_lshl_add_u32 v2, v{VG}, 4, v2")
                a(f"v_add_u32 v21, {RED}, v2")
        self.stamp(5)
        a(f"ds_write_b128 v20, {vr(acc[0],4)}")
        a(f"ds_write_b128 v20, {vr(acc[1],4)} offset:1024")
        a("v_and_b32 v3, 3, v1")
        for k in range(4):
            a(f"v_cmp_eq_u32 vcc, {k}, v3")
            a(f"v_cndmask_b32 v{VM+k}, 0, -1, vcc")
        a("s_waitcnt lgkmcnt(0)")
        a("s_barrier")
        for w in range(4):
            a(f"ds_read_b128 {vr(32+4*w,4)}, v21 offset:{2048*w}")
        for w in range(4):
            a(f"ds_read_b128 {vr(48+4*w,4)}, v21 offset:{2048*w+128}")
        a("s_mov_b32 s7, 0xffff0000")
        for base, wt in ((32, 4), (48, 0)):
            a(f"s_waitcnt lgkmcnt({wt})")
            for k in range(2):
                a(f"v_pk_add_f32 {vr(base+2*k,2)}, {vr(base+2*k,2)}, {vr(base+4+2*k,2)}")
                a(f"v_pk_add_f32 {vr(base+8+2*k,2)}, {vr(base+8+2*k,2)}, {vr(base+12+2*k,2)}")
            for k in range(2):
                a(f"v_pk_add_f32 {vr(base+2*k,2)}, {vr(base+2*k,2)}, {vr(base+8+2*k,2)}")
            a(f"v_cvt_pk_bf16_f32 v{base+4}, v{base}, v{base+1}")
            a(f"v_cvt_pk_bf16_f32 v{base+5}, v{base+2}, v{base+3}")
            a(f"v_lshlrev_b32 v{base}, 16, v{base+4}\nv_and_b32 v{base+1}, s7, v{base+4}")
            a(f"v_lshlrev_b32 v{base+2}, 16, v{base+5}\nv_and_b32 v{base+3}, s7, v{base+5}")
            if base == 32:
                nl2e = f2u(-math.log2(math.e))
                for k in range(4):
                    a(f"v_mul_f32 v{36+k}, {nl2e}, v{32+k}")
                for k in range(4):
                    a(f"v_exp_f32 v{36+k}, v{36+k}")
                for k in range(4):
                    a(f"v_add_f32 v{36+k}, 1.0, v{36+k}")
                for k in range(4):
                    a(f"v_rcp_f32 v{36+k}, v{36+k}")
                for k in range(4):
                    a(f"v_mul_f32 v{32+k}, v{32+k}, v{36+k}")
                a("v_cvt_pk_bf16_f32 v36, v32, v33\nv_cvt_pk_bf16_f32 v37, v34, v35")
                a("v_lshlrev_b32 v32, 16, v36\nv_and_b32 v33, s7, v36\nv_lshlrev_b32 v34, 16, v37\nv_and_b32 v35, s7, v37")
        for k in range(4):
            a(f"v_mul_f32 v{32+k}, v{32+k}, v{48+k}")
        a("v_cvt_pk_bf16_f32 v36, v32, v33\nv_cvt_pk_bf16_f32 v37, v34, v35")
        for ks in range(2):
            for q2 in range(2):
                for m in range(2):
                    a(f"v_and_b32 v{40+4*ks+2*q2+m}, v{36+m}, v{VM+2*ks+q2}")
        self.dense_out(40, 2, 64, VOA, 26)
        self.stamp(6)
        self.stamps_out((128, [(2,8),(4,9),(6,10)]))
        a("s_endpgm")

    def wo(self):
        a, o = self.a, self.o
        a.vm_reset()
        ASTG = 147456
        self.srd(44, 40, 32 * 147456)
        a(f"s_sub_u32 s8, s2, {WG_WO}")
        VOA, VE, VQ, VSA, VWD, VWT = 4, 8, 16, 20, 23, 24
        a("s_add_u32 s26, s8, 72")
        self.outp_addr(VOA, 26)
        self.w_dma_setup(VWD)
        a("s_mul_i32 s29, s3, 9216")
        a("s_mul_i32 s28, s8, 147456\ns_add_u32 s28, s28, s29")
        a("s_waitcnt lgkmcnt(0)")
        a(f"buffer_load_dwordx2 {vr(VE,2)}, off, {WS}, 0 sc1", "ep")
        self.outp_clear(VOA, 26, VQ)
        self.w_dma_issue(VWD, SA, 28, 0, "w")
        a.wait_vm("clr")
        self.get_tag(VE)
        self.notice(26, VQ)
        for m in range(1, 4):
            self.w_dma_issue(VWD, SA, 28, m, "w")
        self.stage_addr(VSA, ASTG)
        self.w_tr_addr(VWT)
        a(f"s_lshl_b32 s13, s8, 13\ns_add_u32 s13, s13, {WS_CX}")
        a("s_waitcnt vmcnt(0)")
        a("s_barrier")
        self.stamp(1)
        self.w_tr_reads(VWT, 4)
        a.vm_reset()
        self.stage_partials("cx", 13, 40, VSA, ASTG, 48)
        self.stamp(2)
        a("s_waitcnt lgkmcnt(0)")
        self.dense_out(48, 4, 64, VOA, 26)
        self.stamp(3)
        self.stamps_out((200, [(1,11),(3,12)]))
        a("s_endpgm")

    def fin(self):
        a, o = self.a, self.o
        a.vm_reset()
        self.srd(56, 80, 4608)
        a(f"s_sub_u32 s8, s2, {WG_FIN}")
        a("s_lshr_b32 s6, s3, 1\ns_lshl_b32 s9, s8, 1\ns_add_u32 s9, s9, s6")
        a("s_and_b32 s10, s3, 1")
        a("s_mul_i32 s11, s9, 57\ns_lshr_b32 s11, s11, 9")
        a("s_mul_i32 s6, s11, 9\ns_sub_u32 s12, s9, s6")
        VG, VL = 14, 15
        a(f"v_lshrrev_b32 v{VG}, 4, v1\nv_and_b32 v{VL}, 15, v1")
        a("s_and_b32 s6, s12, 3\ns_mul_i32 s6, s6, 576\ns_lshr_b32 s7, s12, 2\ns_lshl_b32 s7, s7, 8\ns_add_u32 s6, s6, s7")
        a("s_lshl_b32 s7, s11, 4\ns_add_u32 s6, s6, s7")
        a(f"v_lshl_add_u32 v4, v{VG}, 6, v{VL}")
        a("v_bfe_u32 v2, v1, 2, 2")
        a("v_mul_u32_u24 v2, 576, v2")
        a("v_and_b32 v3, 3, v1")
        a("v_lshl_add_u32 v2, v3, 2, v2")
        a(f"v_add_u32 v2, v2, v{VG}")
        a("s_cmp_eq_u32 s12, 8")
        a("s_cselect_b64 vcc, -1, 0")
        a("v_cndmask_b32 v4, v4, v2, vcc")
        a("v_add_u32 v4, s6, v4")
        a("v_lshlrev_b32 v4, 1, v4")
        a(f"v_mul_u32_u24 v5, 9216, v{VG}")
        a(f"v_lshl_add_u32 v5, v{VL}, 4, v5")
        a(f"s_mul_i32 s13, s10, {4*9216}\ns_lshl_b32 s6, s9, 8\ns_add_u32 s13, s13, s6\ns_add_u32 s13, s13, {WS_OUTP}")
        a("v_min_u32 v2, 51, v1")
        a("v_lshrrev_b32 v3, 2, v2")
        a("v_and_b32 v2, 3, v2")
        a("v_lshl_add_u32 v2, v3, 3, v2")
        a("v_lshlrev_b32 v6, 6, v2")
        a(f"s_mul_i32 s14, s11, {104*64}\ns_lshl_b32 s6, s10, 8\ns_add_u32 s14, s14, s6\ns_add_u32 s14, s14, {WS_NOTICE}")
        a("s_waitcnt lgkmcnt(0)")
        a(f"buffer_load_dwordx2 v[8:9], off, {WS}, 0 sc1", "ep")
        a(f"buffer_load_ushort v10, v4, {XS}, 0 offen", "x")
        a("s_waitcnt vmcnt(0)")
        self.get_tag(8)
        a("s_barrier")
        a("v_mov_b32 v16, s4\nv_mov_b32 v17, s5\nv_mov_b32 v18, s4\nv_mov_b32 v19, s5")
        a("s_cmp_lg_u32 s3, 0")
        a("s_cbranch_scc1 L_fin_nost")
        a(f"s_lshl_b32 s6, s8, 7\ns_add_u32 s6, s6, {WS_STARTED}")
        a("s_mov_b64 exec, 1")
        a(f"buffer_store_dwordx4 v[16:19], off, {WS}, s6 sc1", "-")
        a("s_mov_b64 exec, -1")
        a.label("L_fin_nost")
        a("s_lshl_b32 s15, s8, 2\ns_add_u32 s15, s15, s3")
        a("s_cmp_lg_u32 s15, 1")
        a("s_cbranch_scc1 L_fin_nobump")
        a(f"v_min_u32 v7, {N_FIN-1}, v1")
        a("v_lshlrev_b32 v7, 7, v7")
        a(f"s_mov_b32 s16, {WS_STARTED}")
        a.vm_reset()
        self.poll_group("st", 1, lambda j, tag: a(f"buffer_load_dwordx4 v[20:23], v7, {WS}, s16 offen sc1", tag),
                        lambda j: a("v_cmp_ne_u64 vcc, s[4:5], v[22:23]"), lambda j: None)
        a.label("L_fin_nobump")
        a.vm_reset()
        self.poll_group("nt", 1, lambda j, tag: a(f"buffer_load_dwordx4 v[20:23], v6, {WS}, s14 offen sc1", tag),
                        lambda j: a("v_cmp_ne_u64 vcc, s[4:5], v[22:23]"), lambda j: None)
        self.stamp(1)
        VD = 32
        def issue(j, tag):
            a(f"s_add_u32 s6, s13, {j*8*9216}")
            a(f"buffer_load_dwordx4 {vr(VD+4*j,4)}, v5, {WS}, s6 offen sc1", tag)
        def check(j):
            a(f"v_max3_u32 v2, v{VD+4*j}, v{VD+4*j+1}, v{VD+4*j+2}")
            a(f"v_max_u32 v2, v2, v{VD+4*j+3}")
            a("v_cmp_eq_u32 vcc, -1, v2")
        a.vm_reset()
        self.poll_group("pre", 1, issue, check, lambda j: None)
        self.stamp(2)
        a.vm_reset()
        self.poll_group("pa", 12, lambda j, tag: issue(j+1, tag), lambda j: check(j+1), lambda j: None)
        self.stamp(3)
        n = 13
        while n > 1:
            h = n // 2
            for j in range(h):
                src = n - 1 - j
                for k in range(2):
                    a(f"v_pk_add_f32 {vr(VD+4*j+2*k,2)}, {vr(VD+4*j+2*k,2)}, {vr(VD+4*src+2*k,2)}")
            n -= h
        a(f"v_permlane32_swap_b32 v{VD}, v{VD+2}")
        a(f"v_permlane32_swap_b32 v{VD+1}, v{VD+3}")
        a(f"v_add_f32 v{VD}, v{VD}, v{VD+2}")
        a(f"v_add_f32 v{VD+1}, v{VD+1}, v{VD+3}")
        a(f"v_permlane16_swap_b32 v{VD}, v{VD+1}")
        a(f"v_add_f32 v{VD}, v{VD}, v{VD+1}")
        a("s_lshr_b32 s6, s3, 1\ns_lshl_b32 s6, s6, 8")
        a("v_lshl_add_u32 v2, v1, 2, s6")
        a("s_cmp_eq_u32 s10, 0")
        a("s_cbranch_scc1 L_fin_even")
        a(f"ds_write_b32 v2, v{VD}")
        a("s_waitcnt lgkmcnt(0)")
        a("s_barrier")
        a("s_cmp_lg_u32 s15, 1")
        a("s_cbranch_scc1 L_fin_end")
        a("s_mov_b64 exec, 1")
        a(f"buffer_store_dwordx2 v[16:17], off, {WS}, 0 sc1")
        a("s_branch L_fin_end")
        a.label("L_fin_even")
        a("v_lshlrev_b32 v10, 16, v10")
        a(f"v_add_f32 v{VD}, v{VD}, v10")
        a("s_barrier")
        a("ds_read_b32 v3, v2")
        a("s_waitcnt lgkmcnt(0)")
        a(f"v_add_f32 v{VD}, v{VD}, v3")
        a(f"v_cvt_pk_bf16_f32 v{VD}, v{VD}, v{VD}")
        a(f"buffer_store_short v{VD}, v4, {SD}, 0 offen")
        a.label("L_fin_end")
        self.stamp(4)
        self.stamps_out((232, [(0,13),(4,14)]))
        a("s_endpgm")

    def build(self):
        a = self.a
        self.preamble()
        self.att()
        a.label("L_notatt")
        a(f"s_cmp_ge_u32 s2, {WG_WO}")
        a("s_cbranch_scc1 L_notffn")
        self.ffn()
        a.label("L_notffn")
        a(f"s_cmp_ge_u32 s2, {WG_FIN}")
        a("s_cbranch_scc1 L_fin")
        self.wo()
        a.label("L_fin")
        self.fin()
        a.label("L_end")
        a("s_endpgm")
        a.label("L_codeend")
        body = a.finalize()
        head = open(f"cdna_kernels/{NAME}.s.ref").read().split("; @launch")[0]
        txt = head + f"; @launch grid=({NWG},1,1) block=(256,1,1) lds=163840\n"
        txt += f""".amdgcn_target "amdgcn-amd-amdhsa--gfx950"
.text
.globl {NAME}_kernel
.p2align 8
.type {NAME}_kernel,@function
{NAME}_kernel:
{body}.section .rodata,"a"
.p2align 6
.amdhsa_kernel {NAME}_kernel
  .amdhsa_next_free_vgpr 512
  .amdhsa_next_free_sgpr 102
  .amdhsa_accum_offset 256
  .amdhsa_group_segment_fixed_size 0
  .amdhsa_kernarg_size 104
  .amdhsa_user_sgpr_count 2
  .amdhsa_user_sgpr_kernarg_segment_ptr 1
  .amdhsa_system_sgpr_workgroup_id_x 1
.end_amdhsa_kernel
"""
        return txt

def gen(**kw):
    return Gen(**kw).build()

if __name__ == "__main__":
    out = sys.argv[1] if len(sys.argv) > 1 else f"cdna_kernels/{NAME}.s"
    kw = {}
    for x in sys.argv[2:]:
        k, v = x.split("=")
        kw[k] = eval(v)
    open(out, "w").write(gen(**kw))
```

```python
import sys, struct, math
sys.path.insert(0, "gen")
from asmlib import Asm

NAME = "parallel_sum__compressed_kv_cla__glu_gated_swiglu__decode"
N_ATT, N_FFN, N_WO, N_FIN = 128, 72, 32, 18
WG_FFN, WG_WO, WG_FIN = 128, 200, 232
NWG = 256
WG_QA = 192
WS_STARTED, WS_NOTICE, WS_QP, WS_QA, WS_ML, WS_CX = 0x1000, 0x4000, 0x10000, 0x50000, 0xC0000, 0x80000
WS_CN = 0xC000
WS_NA = 0x70000
WS_OUTP, WS_OP, WS_STAMP, WS_SIZE = 0x100000, 0x200000, 0x600000, 0x800000
MAXIT = 20000

def f2u(x):
    return "0x%08x" % struct.unpack("<I", struct.pack("<f", x))[0]

def vr(b, n=1):
    return f"v{b}" if n == 1 else f"v[{b}:{b+n-1}]"
def ar(b, n=1):
    return f"a{b}" if n == 1 else f"a[{b}:{b+n-1}]"

WS, XS, SA, SB, SC, SD = "s[36:39]", "s[40:43]", "s[44:47]", "s[48:51]", "s[52:55]", "s[56:59]"

DEF = dict(diag=False, nt="nt", prefetch=False, slowres=3, x_noffn=0, x_nowo=0, x_noclr=0,
           ml_prod=True, laq=10, q0a=2, la=12, qa_after=2, ffn_w1=4, ffn_n1=16, ffn_w2=14, ffn_r=1)

class Gen:
    def __init__(self, **kw):
        self.o = dict(DEF); self.o.update(kw)
        self.a = Asm()
        self.nst = 0

    def stamp(self, k):
        if self.o["diag"]:
            self.a(f"s_memrealtime s[{64+2*k}:{65+2*k}]")

    def stamps_out(self, dbg=None, n=16):
        a = self.a
        if not self.o["diag"]:
            return
        a("s_memtime s[94:95]")
        if self.o["diag"] == "dbg":
            wg, lst = dbg
            L = a.newlabel("nodbg")
            a(f"s_lshl_b32 s6, s2, 2\ns_add_u32 s6, s6, s3\ns_cmp_lg_u32 s6, {wg*4}")
            a(f"s_cbranch_scc1 {L}")
            self.srd(52, 88, 256)
            a("s_waitcnt lgkmcnt(0)")
            a("s_sub_u32 s94, s94, s92")
            a("s_mov_b64 exec, 1")
            for k, slot in lst:
                a(f"v_mov_b32 v2, s{64+2*k}")
                a("v_and_b32 v2, 0xfffff, v2")
                a(f"buffer_store_dword v2, off, {SC}, 0 offset:{4*slot}")
            a.label(L)
            return
        a("s_waitcnt lgkmcnt(0)")
        a("s_mov_b64 exec, -1")
        for k in range(n):
            a(f"v_writelane_b32 v2, s{64+2*k}, {k}")
        a("s_lshl_b32 s6, s2, 2\ns_add_u32 s6, s6, s3\ns_lshl_b32 s6, s6, 6")
        a(f"s_add_u32 s6, s6, {WS_STAMP}")
        a("v_lshlrev_b32 v3, 2, v1")
        a("s_mov_b64 exec, 0xffff")
        a(f"buffer_store_dword v2, v3, {WS}, s6 offen")

    def srd(self, base, koff, size):
        a = self.a
        a(f"s_load_dwordx2 s[{base}:{base+1}], s[0:1], {koff}")
        a(f"s_mov_b32 s{base+2}, {size}")
        a(f"s_mov_b32 s{base+3}, 0x00020000")

    def allreduce(self, regs, tmpregs, op, to64):
        a = self.a
        for sh in (8, 4, 2, 1):
            for r in regs:
                a(f"{op}_dpp v{r}, v{r}, v{r} row_ror:{sh} row_mask:0xf bank_mask:0xf")
        for sw in (["v_permlane16_swap_b32"] + (["v_permlane32_swap_b32"] if to64 else [])):
            for r, t in zip(regs, tmpregs):
                a(f"v_mov_b32 v{t}, v{r}")
            for r, t in zip(regs, tmpregs):
                a(f"{sw} v{r}, v{t}")
            for r, t in zip(regs, tmpregs):
                a(f"{op} v{r}, v{r}, v{t}")

    def get_tag(self, v):
        a = self.a
        a(f"v_readfirstlane_b32 s4, v{v}")
        a(f"v_readfirstlane_b32 s5, v{v+1}")
        a("s_add_u32 s4, s4, 1\ns_addc_u32 s5, s5, 0")

    def load_epoch_x(self, ve, vx):
        a = self.a
        if ve is not None:
            a(f"buffer_load_dwordx2 {vr(ve,2)}, off, {WS}, 0 sc1", "ep")
        a("s_mul_i32 s6, s3, 1152")
        a("v_lshlrev_b32 v2, 4, v1")
        a("v_lshlrev_b32 v3, 1, v1")
        a(f"buffer_load_dwordx4 {vr(vx,4)}, v2, {XS}, s6 offen", "x")
        a(f"buffer_load_ushort {vr(vx+4)}, v3, {XS}, s6 offen offset:1024", "x")

    def layernorm(self, vx, vt, ldsbase):
        a = self.a
        f = [vt + k for k in range(9)]
        d = [vt + 12 + k for k in range(9)]
        s1, s2, t1, t2, m, r = vt + 22, vt + 23, vt + 24, vt + 25, vt + 26, vt + 27
        a("s_mov_b32 s7, 0xffff0000")
        for k in range(4):
            a(f"v_lshlrev_b32 v{f[2*k]}, 16, v{vx+k}")
            a(f"v_and_b32 v{f[2*k+1]}, s7, v{vx+k}")
        a(f"v_lshlrev_b32 v{f[8]}, 16, v{vx+4}")
        a(f"v_readfirstlane_b32 s6, v{f[0]}")
        for k in range(9):
            a(f"v_subrev_f32 v{d[k]}, s6, v{f[k]}")
        a(f"v_add_f32 v{s1}, v{d[0]}, v{d[1]}")
        a(f"v_mul_f32 v{s2}, v{d[0]}, v{d[0]}")
        a(f"v_fmac_f32 v{s2}, v{d[1]}, v{d[1]}")
        for k in range(2, 9):
            a(f"v_add_f32 v{s1}, v{s1}, v{d[k]}")
            a(f"v_fmac_f32 v{s2}, v{d[k]}, v{d[k]}")
        self.allreduce([s1, s2], [t1, t2], "v_add_f32", True)
        inv = f2u(1.0 / 576.0)
        a(f"v_mul_f32 v{s1}, {inv}, v{s1}")
        a(f"v_mul_f32 v{s2}, {inv}, v{s2}")
        a(f"v_fma_f32 v{s2}, -v{s1}, v{s1}, v{s2}")
        a(f"v_add_f32 v{s1}, s6, v{s1}")
        a(f"v_max_f32 v{s2}, 0, v{s2}")
        a(f"v_cvt_pk_bf16_f32 v{t1}, v{s1}, v{s2}")
        a(f"v_lshlrev_b32 v{m}, 16, v{t1}")
        a(f"v_and_b32 v{t2}, s7, v{t1}")
        a(f"v_add_f32 v{t2}, {f2u(1e-5)}, v{t2}")
        a(f"v_cvt_pk_bf16_f32 v{t2}, v{t2}, v{t2}")
        a(f"v_and_b32 v{t2}, s7, v{t2}")
        a(f"v_sqrt_f32 v{t2}, v{t2}")
        for k in range(9):
            a(f"v_sub_f32 v{f[k]}, v{f[k]}, v{m}")
        a(f"v_cvt_pk_bf16_f32 v{t2}, v{t2}, v{t2}")
        a(f"v_and_b32 v{t2}, s7, v{t2}")
        a(f"v_rcp_f32 v{r}, v{t2}")
        for k in range(4):
            a(f"v_cvt_pk_bf16_f32 v{f[2*k+1]}, v{f[2*k]}, v{f[2*k+1]}")
        a(f"v_cvt_pk_bf16_f32 v{f[8]}, v{f[8]}, v{f[8]}")
        for k in range(4):
            a(f"v_lshlrev_b32 v{f[2*k]}, 16, v{f[2*k+1]}")
            a(f"v_and_b32 v{f[2*k+1]}, s7, v{f[2*k+1]}")
        a(f"v_and_b32 v{f[8]}, s7, v{f[8]}")
        for k in range(9):
            a(f"v_mul_f32 v{f[k]}, v{f[k]}, v{r}")
        for k in range(9):
            a(f"v_cvt_pk_bf16_f32 v{d[k]}, v{f[k]}, v{f[k]}")
        a("s_mul_i32 s6, s3, 2304")
        a(f"s_add_u32 s6, s6, {ldsbase}")
        a(f"v_lshl_add_u32 v{t1}, v1, 5, s6")
        a(f"v_lshl_add_u32 v{t2}, v1, 2, s6")
        a(f"ds_write_b128 v{t1}, {vr(d[0],4)}")
        a(f"ds_write_b128 v{t1}, {vr(d[4],4)} offset:16")
        a(f"ds_write_b32 v{t2}, v{d[8]} offset:2048")

    def masks(self, vm):
        a = self.a
        a("v_and_b32 v2, 1, v1")
        a("v_lshlrev_b32 v2, 4, v2")
        a("v_mov_b32 v3, 0xffff")
        a("v_lshlrev_b32 v2, v2, v3")
        a("v_bfe_u32 v3, v1, 1, 2")
        for r in range(4):
            a(f"v_cmp_eq_u32 vcc, {r}, v3")
            a(f"v_cndmask_b32 v{vm+r}, 0, v2, vcc")

    def poll_group(self, name, n, issue, check, post, first_issued=None):
        a = self.a
        allm = (1 << n) - 1
        Lp, Ld = a.newlabel(name + "_poll"), a.newlabel(name + "_done")
        if first_issued is None:
            for j in range(n):
                issue(j, f"{name}{j}")
            first_issued = [f"{name}{j}" for j in range(n)]
        a("s_mov_b32 s63, 0")
        if n == 1:
            a.wait_vm(first_issued[0])
            a.label(Lp)
            check(0)
            a("s_cmp_eq_u64 vcc, 0")
            a(f"s_cbranch_scc1 {Ld}")
            issue(0, "-")
            a("s_add_u32 s63, s63, 1")
            a(f"s_cmp_lt_u32 s63, {MAXIT}")
            a("s_waitcnt vmcnt(0)")
            a(f"s_cbranch_scc1 {Lp}")
            a.label(Ld)
            post(0)
            return
        a("s_mov_b32 s62, 0")
        def body(first):
            for j in range(n):
                Ls, Lok = a.newlabel(name + "_s"), a.newlabel(name + "_ok")
                if first:
                    a.wait_vm(first_issued[j])
                else:
                    a(f"s_bitcmp1_b32 s62, {j}")
                    a(f"s_cbranch_scc1 {Ls}")
                check(j)
                a("s_cmp_eq_u64 vcc, 0")
                a(f"s_cbranch_scc1 {Lok}")
                issue(j, "-")
                a(f"s_branch {Ls}")
                a.label(Lok)
                a(f"s_bitset1_b32 s62, {j}")
                post(j)
                a.label(Ls)
            a(f"s_cmp_eq_u32 s62, {allm}")
            a(f"s_cbranch_scc1 {Ld}")
        body(True)
        a.label(Lp)
        a("s_waitcnt vmcnt(0)")
        body(False)
        a("s_add_u32 s63, s63, 1")
        a(f"s_cmp_lt_u32 s63, {MAXIT}")
        a(f"s_cbranch_scc1 {Lp}")
        a("s_waitcnt vmcnt(0)")
        a.label(Ld)

    def stage_issue(self, name, sbase, vg, vt):
        for j in range(2):
            self.a(f"buffer_load_dwordx4 {vr(vg+4*j,4)}, v{vt}, {WS}, s{sbase} offen offset:{1024*j} sc1", f"{name}{j}")

    def stage_partials(self, name, sbase, vg, vt, ldsbase, vA, issued=False):
        a = self.a
        def issue(j, tag):
            a(f"buffer_load_dwordx4 {vr(vg+4*j,4)}, v{vt}, {WS}, s{sbase} offen offset:{1024*j} sc1", tag)
        def check(j):
            a(f"v_cmp_ne_u64 vcc, s[4:5], {vr(vg+4*j+2,2)}")
        def action(j):
            a(f"ds_write_b64 v{vt+1}, {vr(vg+4*j,2)} offset:{j*8*272}")
        self.poll_group(name, 2, issue, check, action, [f"{name}0", f"{name}1"] if issued else None)
        a("s_waitcnt lgkmcnt(0)")
        a("s_barrier")
        for ks in range(4):
            a(f"ds_read_b128 {vr(vA+4*ks,4)}, v{vt+2} offset:{64*ks}")

    def stage_addr(self, vt, ldsbase):
        a = self.a
        a("s_lshl_b32 s6, s3, 11")
        a(f"v_lshl_add_u32 v{vt}, v1, 4, s6")
        a("v_lshrrev_b32 v2, 5, v1")
        a("v_mul_u32_u24 v2, 1088, v2")
        a("v_and_b32 v3, 31, v1")
        a("v_lshl_add_u32 v2, v3, 3, v2")
        a("s_mul_i32 s6, s3, 272")
        a(f"s_add_u32 s6, s6, {ldsbase}")
        a(f"v_add_u32 v{vt+1}, s6, v2")
        a("v_and_b32 v2, 15, v1")
        a("v_mul_u32_u24 v2, 272, v2")
        a("v_lshrrev_b32 v3, 4, v1")
        a("v_lshl_add_u32 v2, v3, 4, v2")
        a(f"v_add_u32 v{vt+2}, {ldsbase}, v2")

    def w_dma_setup(self, vo):
        a = self.a
        a("v_lshrrev_b32 v2, 3, v1")
        a("v_bfe_u32 v3, v1, 1, 2")
        a(f"v_lshrrev_b32 v{vo}, 4, v1")
        a(f"v_xor_b32 v3, v3, v{vo}")
        a("s_and_b32 s6, s3, 1\ns_lshl_b32 s6, s6, 1")
        a("v_xor_b32 v3, s6, v3")
        a("v_mul_u32_u24 v2, 1152, v2")
        a("v_lshl_add_u32 v2, v3, 5, v2")
        a("v_and_b32 v3, 1, v1")
        a(f"v_lshl_add_u32 v{vo}, v3, 4, v2")

    def w_dma_issue(self, vo, srd, sg, m, tag, cbs=range(9)):
        a = self.a
        nt = self.o["nt"]
        for cb in cbs:
            a(f"s_add_u32 m0, s{sg+1}, {m*36864 + cb*1024}")
            a(f"s_add_u32 s6, s{sg}, {m*36864 + cb*128}")
            a(f"buffer_load_dwordx4 v{vo}, {srd}, s6 offen {nt} lds", tag)

    def w_tr_addr(self, vb):
        a = self.a
        a("v_lshrrev_b32 v2, 4, v1")
        a(f"v_mul_u32_u24 v{vb}, 9216, v2")
        a("v_bfe_u32 v3, v1, 2, 2")
        a(f"v_lshl_add_u32 v{vb}, v3, 7, v{vb}")
        a("v_lshrrev_b32 v3, 1, v3")
        a("v_and_b32 v2, 1, v2")
        a("v_lshlrev_b32 v2, 1, v2")
        a("v_xor_b32 v3, v3, v2")
        a("v_xor_b32 v3, s3, v3")
        a(f"v_lshl_add_u32 v{vb}, v3, 5, v{vb}")
        a("v_and_b32 v3, 3, v1")
        a(f"v_lshl_add_u32 v{vb}, v3, 3, v{vb}")
        a(f"v_xor_b32 v{vb+1}, 64, v{vb}")
        a(f"v_add_u32 v{vb+1}, 512, v{vb+1}")

    def w_tr_reads(self, vb, nks):
        a = self.a
        for ks in range(nks):
            if ks == 2:
                a(f"v_add_u32 v{vb}, {2*36864}, v{vb}")
                a(f"v_add_u32 v{vb+1}, {2*36864}, v{vb+1}")
            for cb in range(9):
                for hf in range(2):
                    a(f"ds_read_b64_tr_b16 {ar((ks*9+cb)*4+2*hf,2)}, v{vb+hf} offset:{(ks%2)*36864 + cb*1024}")

    def outp_addr(self, va, sp):
        a = self.a
        a(f"v_lshlrev_b32 v{va}, 4, v1")
        a(f"v_lshlrev_b32 v{va+1}, 2, v1")
        a(f"s_mul_i32 s6, s3, {104*64}")
        a(f"s_lshl_b32 s{sp+1}, s{sp}, 6")
        a(f"s_add_u32 s{sp+1}, s{sp+1}, s6")
        a(f"s_add_u32 s{sp+1}, s{sp+1}, {WS_NOTICE}")
        a(f"s_mul_i32 s{sp}, s{sp}, 9216")
        a("s_mul_i32 s6, s3, 2304")
        a(f"s_add_u32 s{sp}, s{sp}, s6")
        a(f"s_add_u32 s{sp}, s{sp}, {WS_OUTP}")

    def outp_store(self, va, sp, q0, q1, q2, tag):
        a = self.a
        a(f"buffer_store_dwordx4 {vr(q0,4)}, v{va}, {WS}, s{sp} offen sc1", tag)
        a(f"buffer_store_dwordx4 {vr(q1,4)}, v{va}, {WS}, s{sp} offen offset:1024 sc1", tag)
        a(f"buffer_store_dword v{q2}, v{va+1}, {WS}, s{sp} offen offset:2048 sc1", tag)

    def outp_clear(self, va, sp, vq):
        a = self.a
        for k in range(4):
            a(f"v_mov_b32 v{vq+k}, -1")
        self.outp_store(va, sp, vq, vq, vq, "clr")

    def notice(self, sp, vq):
        a = self.a
        a(f"v_mov_b32 v{vq}, s4\nv_mov_b32 v{vq+1}, s5\nv_mov_b32 v{vq+2}, s4\nv_mov_b32 v{vq+3}, s5")
        a("s_mov_b64 exec, 1")
        a(f"buffer_store_dwordx4 {vr(vq,4)}, off, {WS}, s{sp+1} sc1", "note")
        a("s_mov_b64 exec, -1")

    def clear_chunks(self, sb, n, va, vq):
        a = self.a
        for c in range(0 if self.o["x_noclr"] else n):
            if c % 4 == 0 and c:
                a(f"s_add_u32 s{sb}, s{sb}, 4096")
            a(f"buffer_store_dwordx4 {vr(vq,4)}, v{va}, {WS}, s{sb} offen offset:{(c%4)*1024} sc1", "clr")

    def post_cn(self, sb, vq, nm):
        a = self.a
        a("s_cmp_lg_u32 s3, 0")
        a(f"s_cbranch_scc1 L_{nm}_nocn")
        a("s_mov_b64 exec, 1")
        a(f"buffer_store_dwordx4 {vr(vq,4)}, off, {WS}, s{sb} sc1", "-")
        a("s_mov_b64 exec, -1")
        a.label(f"L_{nm}_nocn")

    def dense_out(self, vA, nks, vacc, va, sp):
        a = self.a
        for ks in range(nks):
            for cb in range(9):
                c = "0" if ks == 0 else vr(vacc + 4*cb, 4)
                a(f"v_mfma_f32_16x16x32_bf16 {vr(vacc+4*cb,4)}, {vr(vA+4*ks,4)}, {ar((ks*9+cb)*4,4)}, {c}")
        q = vacc + 36
        for grp in ((0, 1, 2, 3), (4, 5, 6, 7), (8,)):
            for cb in grp:
                a(f"v_add_f32 v{vacc+4*cb}, v{vacc+4*cb}, v{vacc+4*cb+1}")
                a(f"v_add_f32 v{vacc+4*cb+2}, v{vacc+4*cb+2}, v{vacc+4*cb+3}")
            for cb in grp:
                a(f"v_add_f32 v{q+cb}, v{vacc+4*cb}, v{vacc+4*cb+2}")
            if grp[0] == 0:
                a(f"buffer_store_dwordx4 {vr(q,4)}, v{va}, {WS}, s{sp} offen sc1")
            elif grp[0] == 4:
                a(f"buffer_store_dwordx4 {vr(q+4,4)}, v{va}, {WS}, s{sp} offen offset:1024 sc1")
            else:
                a(f"buffer_store_dword v{q+8}, v{va+1}, {WS}, s{sp} offen offset:2048 sc1")

    def preamble(self):
        a = self.a
        self.stamp(0)
        if self.o["diag"]:
            a("s_memtime s[92:93]")
        a(f"s_cmp_ge_u32 s2, {NWG}")
        a("s_cbranch_scc1 L_end")
        self.srd(36, 96, WS_SIZE)
        self.srd(40, 0, 4608)
        a("v_and_b32 v1, 63, v0")
        a("v_lshrrev_b32 v2, 6, v0")
        if self.o["prefetch"]:
            a("s_getpc_b64 s[60:61]")
            a.label("L_pc")
            a("v_lshlrev_b32 v3, 7, v0")
            a("v_min_u32 v3, L_codeend-L_pc-4, v3")
            a("v_readfirstlane_b32 s3, v2")
            a("global_load_dword v255, v3, s[60:61]", "pf")
        else:
            a("v_readfirstlane_b32 s3, v2")
        a(f"s_cmp_ge_u32 s2, {WG_FFN}")
        a("s_cbranch_scc1 L_notatt")

    def ln_stats(self, vx, vt):
        a = self.a
        f = [vt + k for k in range(9)]
        d = [vt + 12 + k for k in range(9)]
        s1, s2, t1, t2, m, r = vt + 22, vt + 23, vt + 24, vt + 25, vt + 26, vt + 27
        a("s_mov_b32 s7, 0xffff0000")
        for k in range(4):
            a(f"v_lshlrev_b32 v{f[2*k]}, 16, v{vx+k}")
            a(f"v_and_b32 v{f[2*k+1]}, s7, v{vx+k}")
        a(f"v_lshlrev_b32 v{f[8]}, 16, v{vx+4}")
        a(f"v_readfirstlane_b32 s6, v{f[0]}")
        for k in range(9):
            a(f"v_subrev_f32 v{d[k]}, s6, v{f[k]}")
        a(f"v_add_f32 v{s1}, v{d[0]}, v{d[1]}")
        a(f"v_mul_f32 v{s2}, v{d[0]}, v{d[0]}")
        a(f"v_fmac_f32 v{s2}, v{d[1]}, v{d[1]}")
        for k in range(2, 9):
            a(f"v_add_f32 v{s1}, v{s1}, v{d[k]}")
            a(f"v_fmac_f32 v{s2}, v{d[k]}, v{d[k]}")
        self.allreduce([s1, s2], [t1, t2], "v_add_f32", True)
        inv = f2u(1.0 / 576.0)
        a(f"v_mul_f32 v{s1}, {inv}, v{s1}")
        a(f"v_mul_f32 v{s2}, {inv}, v{s2}")
        a(f"v_fma_f32 v{s2}, -v{s1}, v{s1}, v{s2}")
        a(f"v_add_f32 v{s1}, s6, v{s1}")
        a(f"v_max_f32 v{s2}, 0, v{s2}")
        a(f"v_cvt_pk_bf16_f32 v{t1}, v{s1}, v{s2}")
        a(f"v_lshlrev_b32 v{m}, 16, v{t1}")
        a(f"v_and_b32 v{t2}, s7, v{t1}")
        a(f"v_add_f32 v{t2}, {f2u(1e-5)}, v{t2}")
        a(f"v_cvt_pk_bf16_f32 v{t2}, v{t2}, v{t2}")
        a(f"v_and_b32 v{t2}, s7, v{t2}")
        a(f"v_sqrt_f32 v{t2}, v{t2}")
        a(f"v_cvt_pk_bf16_f32 v{t2}, v{t2}, v{t2}")
        a(f"v_and_b32 v{t2}, s7, v{t2}")
        a(f"v_rcp_f32 v{r}, v{t2}")

    def att(self):
        a, o = self.a, self.o
        nt = o["nt"]
        STG = 131072
        RED, STAT = STG, STG + 12288
        MX, LX, PX, AL, LAT = 32768, 32768 + 512, 32768 + 1024, 32768 + 1024 + 8192, 32768 + 1024 + 8192 + 512
        self.srd(44, 16, 576 * 8192)
        self.srd(48, 8, 4 * 4096 * 1024)
        self.srd(52, 32, 512 * 8192)
        a("s_and_b32 s8, s2, 3\ns_lshl_b32 s8, s8, 3\ns_bfe_u32 s6, s2, 0x30003\ns_or_b32 s8, s8, s6")
        a("s_bfe_u32 s9, s2, 0x10002\ns_lshl_b32 s9, s9, 1\ns_lshr_b32 s6, s2, 6\ns_or_b32 s9, s9, s6")
        VM, VG, VL = 10, 14, 15
        a(f"v_lshrrev_b32 v{VG}, 4, v1\nv_and_b32 v{VL}, 15, v1")
        a("s_lshl_b32 s6, s3, 2")
        a(f"v_add_u32 v5, s6, v{VG}")
        a(f"v_lshlrev_b32 v6, 4, v{VL}")
        a("v_lshl_add_u32 v4, v5, 16, v6")
        a("v_lshl_add_u32 v7, v5, 13, v6")
        a(f"s_mul_i32 s12, s9, {144*8192}\ns_lshl_b32 s6, s8, 8\ns_add_u32 s12, s12, s6")
        a("v_bfe_u32 v6, v1, 3, 1")
        a("v_mul_u32_u24 v6, 1152, v6")
        a("v_lshl_add_u32 v208, v5, 4, v6")
        a("v_lshl_add_u32 v209, v5, 1, v6")
        a("s_mul_i32 s14, s9, 288")
        VE, VX, VW, VXA, VSEL, VA, VACC, VT = 8, 156, 16, 52, 64, 72, 144, 164
        a("s_waitcnt lgkmcnt(0)")
        for ch in range(2):
            a(f"buffer_load_dwordx4 {vr(VXA+6*ch,4)}, v208, {XS}, s14 offen offset:{2304*ch}", "xa")
            a(f"buffer_load_ushort v{VXA+6*ch+4}, v209, {XS}, s14 offen offset:{2304*ch+256}", "xa")
        self.load_epoch_x(VE, VX)
        for t in range(9):
            if t:
                a(f"s_add_u32 s12, s12, {8192 if t < 8 else 121*8192}")
            a(f"buffer_load_dwordx4 {vr(VW+4*t,4)}, v{4 if t < 8 else 7}, {SA}, s12 offen {nt}", f"wq{t}")
        a("s_bfe_u32 s10, s2, 0x20001")
        a("s_lshr_b32 s11, s2, 3\ns_and_b32 s6, s2, 1\ns_lshl_b32 s6, s6, 4\ns_or_b32 s11, s11, s6")
        VCK = 212
        a(f"v_lshlrev_b32 v6, 2, v{VG}")
        a(f"v_xor_b32 v6, v6, v{VL}")
        a("v_lshlrev_b32 v6, 4, v6")
        a(f"v_lshl_add_u32 v{VCK}, v{VG}, 10, v6")
        for k in range(1, 4):
            a(f"v_xor_b32 v{VCK+k}, {16*(((k&1)<<1)|(k>>1))}, v{VCK}")
        a("s_lshl_b32 s13, s10, 22\ns_lshl_b32 s6, s11, 17\ns_add_u32 s13, s13, s6")
        a("s_mul_i32 s6, s3, 0x8100\ns_add_u32 s13, s13, s6")
        a("s_lshl_b32 s25, s3, 13")
        st = dict(n=0)
        def ensure(k):
            while st["n"] < min(k, 32):
                cq, m = divmod(st["n"], 8)
                a(f"s_add_u32 m0, s25, {cq*32768 + m*1024}")
                a(f"s_xor_b32 s6, s13, {m*4096 + cq*256}")
                a(f"buffer_load_dwordx4 v{VCK+m%4}, {SB}, s6 offen {nt} lds", f"q{cq}")
                st["n"] += 1
        LA, LAQ = o["la"], o["laq"]
        ensure(o["q0a"])
        self.masks(VM)
        a("v_mov_b32 v2, 0x0c0c0c0c")
        a("s_mov_b32 s6, 0x01000100\ns_mov_b32 s7, 0x03020302")
        for r in range(4):
            a(f"v_bfi_b32 v{VSEL+r}, v{VM+r}, s6, v2")
            a(f"v_bfi_b32 v{VSEL+4+r}, v{VM+r}, s7, v2")
            a(f"v_and_b32 v{192+r}, 0x3f803f80, v{VM+r}")
        a(f"s_mul_i32 s6, s3, 3072\ns_add_u32 s6, s6, {RED}")
        a("v_lshl_add_u32 v196, v1, 4, s6")
        a(f"s_lshl_b32 s14, s3, 10\ns_add_u32 s6, s14, {RED}")
        a("v_lshl_add_u32 v197, v1, 4, s6")
        a(f"v_lshlrev_b32 v198, 4, v1\nv_add_u32 v198, {RED+2048}, v198")
        a(f"s_lshl_b32 s6, s3, 3\ns_add_u32 s6, s6, {STAT}")
        a("v_mov_b32 v199, s6")
        a(f"s_lshl_b32 s6, s3, 4\ns_add_u32 s6, s6, {STAT}")
        a("v_lshrrev_b32 v5, 5, v1")
        a("v_lshl_add_u32 v200, v5, 3, s6")
        a("s_lshl_b32 s15, s8, 2\ns_add_u32 s15, s15, s9\ns_lshl_b32 s15, s15, 11\ns_add_u32 s15, s15, s14")
        a(f"s_add_u32 s15, s15, {WS_QP}")
        a("v_lshlrev_b32 v5, 9, v5")
        a(f"v_lshl_add_u32 v5, v{VL}, 5, v5")
        a(f"v_and_b32 v7, 1, v{VG}")
        a("v_lshl_add_u32 v5, v7, 4, v5")
        a.wait_vm("xa")
        self.stamp(1)
        for t in range(9):
            for ch in range(2):
                src = VXA + 6*ch + t//2
                for r in range(4):
                    a(f"v_perm_b32 v{VA+(2*t+ch)*4+r}, v{src}, v{src}, v{VSEL+4*(t%2)+r}")
        a.wait_vm("x")
        self.get_tag(VE)
        self.ln_stats(VX, VT)
        a(f"ds_write_b64 v199, {vr(VT+26,2)}")
        for t in range(9):
            ensure(LAQ - 8 + t)
            a.wait_vm(f"wq{t}")
            for ch in range(3):
                c = "0" if t == 0 else vr(VACC + 4*ch, 4)
                A = vr(VA+(2*t+ch)*4, 4) if ch < 2 else "v[192:195]"
                a(f"v_mfma_f32_16x16x32_bf16 {vr(VACC+4*ch,4)}, {A}, {vr(VW+4*t,4)}, {c}")
        self.stamp(2)
        for ch in range(3):
            a(f"ds_write_b128 v196, {vr(VACC+4*ch,4)} offset:{1024*ch}")
        a("s_waitcnt lgkmcnt(0)")
        a("s_barrier")
        a("s_cmp_ge_u32 s3, 2")
        a("s_cbranch_scc1 L_att_noqp")
        for k in range(4):
            a(f"ds_read_b128 {vr(72+4*k,4)}, v197 offset:{3072*k}")
        for k in range(4):
            a(f"ds_read_b128 {vr(88+4*k,4)}, v198 offset:{3072*k}")
        a("ds_read_b64 v[104:105], v200")
        a("v_mov_b32 v110, s4\nv_mov_b32 v111, s5")
        for base, wt in ((72, 5), (88, 1)):
            a(f"s_waitcnt lgkmcnt({wt})")
            for k in range(2):
                a(f"v_pk_add_f32 {vr(base+2*k,2)}, {vr(base+2*k,2)}, {vr(base+4+2*k,2)}")
                a(f"v_pk_add_f32 {vr(base+8+2*k,2)}, {vr(base+8+2*k,2)}, {vr(base+12+2*k,2)}")
            for k in range(2):
                a(f"v_pk_add_f32 {vr(base+2*k,2)}, {vr(base+2*k,2)}, {vr(base+8+2*k,2)}")
        a("s_waitcnt lgkmcnt(0)")
        for r in range(4):
            a(f"v_fma_f32 v{72+r}, -v104, v{88+r}, v{72+r}")
        for r in range(4):
            a(f"v_mul_f32 v{72+r}, v105, v{72+r}")
        a("v_cvt_pk_bf16_f32 v108, v72, v73")
        a("v_cvt_pk_bf16_f32 v109, v74, v75")
        a(f"buffer_store_dwordx4 v[108:111], v5, {WS}, s15 offen sc1", "-")
        a.label("L_att_noqp")
        self.stamp(3)
        ensure(LA + 5)
        a(f"s_lshl_b32 s26, s3, 12\ns_add_u32 s26, s26, {WS_NA}")
        a("v_lshlrev_b32 v216, 6, v1")
        def na_issue(j, tag):
            a(f"buffer_load_dwordx4 v[220:223], v216, {WS}, s26 offen sc1", tag)
        na_issue(0, "na")
        VQK, VTR, VQB, VSG = 176, 234, 186, 194
        a("v_and_b32 v2, 3, v1")
        a("v_lshlrev_b32 v2, 2, v2")
        a("v_bfe_u32 v3, v1, 2, 1")
        a("v_lshl_or_b32 v2, v3, 1, v2")
        a("v_bfe_u32 v3, v1, 3, 1")
        a("v_or_b32 v2, v2, v3")
        a("v_lshrrev_b32 v3, 5, v1")
        a("v_xor_b32 v2, v2, v3")
        a("v_lshlrev_b32 v2, 4, v2")
        a("v_and_b32 v3, 31, v1")
        a("v_lshl_add_u32 v2, v3, 8, v2")
        a(f"v_add_u32 v{VQK}, s25, v2")
        for k in range(1, 8):
            a(f"v_xor_b32 v{VQK+k}, {32*k}, v{VQK}")
        a("v_bfe_u32 v2, v1, 2, 2")
        a("v_bfe_u32 v3, v1, 4, 1")
        a("v_lshl_add_u32 v7, v3, 2, v2")
        a("v_lshrrev_b32 v5, 5, v1")
        a("v_lshl_add_u32 v7, v5, 4, v7")
        a("v_lshlrev_b32 v2, 2, v2")
        a("v_lshl_or_b32 v2, v3, 1, v2")
        a("v_bfe_u32 v5, v1, 1, 1")
        a("s_lshl_b32 s6, s3, 2")
        a("v_or_b32 v3, s6, v5")
        a("v_xor_b32 v2, v2, v3")
        a("v_lshlrev_b32 v2, 4, v2")
        a("v_lshl_add_u32 v2, v7, 8, v2")
        a("v_and_b32 v3, 1, v1")
        a(f"v_lshl_add_u32 v{VTR}, v3, 3, v2")
        for k in range(1, 4):
            a(f"v_xor_b32 v{VTR+k}, {16*k}, v{VTR}")
        a("v_lshrrev_b32 v3, 5, v1")
        a(f"v_xor_b32 v2, v3, v{VL}")
        a("v_lshlrev_b32 v2, 4, v2")
        a("v_and_b32 v3, 31, v1")
        a("v_lshl_add_u32 v2, v3, 10, v2")
        a(f"s_lshl_b32 s6, s3, 8\ns_add_u32 s6, s6, {STG}")
        a(f"v_add_u32 v{VQB}, s6, v2")
        for k in range(1, 8):
            a(f"v_xor_b32 v{VQB+k}, {32*k}, v{VQB}")
        VL16 = 203
        a(f"v_lshlrev_b32 v{VL16}, 4, v1")
        a("s_and_b32 s6, s3, 1\ns_lshl_b32 s6, s6, 7")
        a(f"v_xor_b32 v2, s6, v{VL16}")
        a(f"s_add_u32 s6, s25, {STG}")
        a(f"v_add_u32 v{VSG}, s6, v2")
        for k in range(1, 8):
            a(f"v_xor_b32 v{VSG+k}, {16*k}, v{VSG}")
        a("s_lshl_b32 s16, s10, 20\ns_lshl_b32 s6, s11, 15\ns_add_u32 s16, s16, s6\ns_add_u32 s16, s16, s25")
        a(f"s_add_u32 s16, s16, {WS_OP}\ns_add_u32 s29, s16, 4096")
        a("s_lshl_b32 s17, s10, 15\ns_add_u32 s17, s17, s25")
        a(f"s_add_u32 s17, s17, {WS_QA}")
        a("s_add_u32 s28, s17, 4096")
        VUV = 204
        a("s_and_b32 s6, s3, 1\ns_lshl_b32 s7, s6, 2")
        a(f"v_or_b32 v2, s7, v{VG}")
        a("v_bfe_u32 v3, v1, 1, 3")
        a("v_xor_b32 v2, v2, v3")
        a("v_lshlrev_b32 v2, 5, v2")
        a(f"v_lshl_add_u32 v2, v{VG}, 20, v2")
        a("v_and_b32 v3, 1, v1")
        a(f"v_lshl_add_u32 v{VUV}, v3, 4, v2")
        a("s_lshr_b32 s7, s3, 1")
        a("s_lshl_b32 s19, s6, 1\ns_add_u32 s19, s19, s7\ns_lshl_b32 s19, s19, 10")
        a("s_lshl_b32 s18, s7, 4\ns_add_u32 s18, s18, s6\ns_lshl_b32 s7, s9, 5\ns_add_u32 s18, s18, s7\ns_lshl_b32 s18, s18, 13")
        a("s_lshl_b32 s6, s8, 8\ns_add_u32 s18, s18, s6")
        a("v_and_b32 v2, 31, v1")
        if o["ml_prod"]:
            a("s_lshl_b32 s20, s10, 5\ns_add_u32 s20, s20, s11\ns_lshl_b32 s20, s20, 2\ns_add_u32 s20, s20, s3\ns_lshl_b32 s20, s20, 9")
            a("v_lshlrev_b32 v219, 4, v2")
            a("s_lshl_b32 s21, s3, 16\ns_lshl_b32 s6, s9, 9\ns_add_u32 s21, s21, s6\ns_lshl_b32 s6, s8, 4\ns_add_u32 s21, s21, s6")
            a("v_lshlrev_b32 v218, 11, v2")
        else:
            a("s_lshl_b32 s20, s10, 5\ns_add_u32 s20, s20, s11\ns_lshl_b32 s20, s20, 4\ns_lshl_b32 s6, s3, 11\ns_add_u32 s20, s20, s6")
            a("v_lshlrev_b32 v219, 13, v2")
            a("s_lshl_b32 s21, s8, 2\ns_add_u32 s21, s21, s9\ns_lshl_b32 s21, s21, 2\ns_add_u32 s21, s21, s3\ns_lshl_b32 s21, s21, 9")
            a("v_lshlrev_b32 v218, 4, v2")
        a(f"s_add_u32 s20, s20, {WS_ML}\ns_add_u32 s21, s21, {WS_ML}")
        a("v_bfe_u32 v3, v1, 2, 2")
        a(f"v_lshl_add_u32 v5, v{VG}, 3, v3")
        a(f"v_and_b32 v6, 1, v{VG}")
        a("v_lshl_or_b32 v3, v6, 2, v3")
        a("s_lshl_b32 s6, s3, 1")
        a("v_xor_b32 v3, s6, v3")
        a("v_lshlrev_b32 v3, 5, v3")
        a("v_lshl_add_u32 v5, v5, 8, v3")
        a("v_and_b32 v3, 3, v1")
        a("v_lshl_add_u32 v228, v3, 3, v5")
        a("v_xor_b32 v229, 32, v228")
        a("v_and_b32 v3, 3, v1")
        a("v_lshlrev_b32 v3, 3, v3")
        a("v_bfe_u32 v7, v1, 2, 3")
        a("v_add_u32 v3, v3, v7")
        a(f"s_lshl_b32 s6, s3, 7\ns_add_u32 s6, s6, {AL}")
        a("v_lshl_add_u32 v230, v3, 2, s6")
        a(f"v_lshl_add_u32 v231, v{VG}, 5, s6")
        a("s_and_b32 s22, s8, 16\ns_and_b32 s6, s8, 3\ns_lshl_b32 s6, s6, 2\ns_or_b32 s22, s22, s6\ns_bfe_u32 s6, s8, 0x20002\ns_or_b32 s22, s22, s6")
        a("s_lshl_b32 s22, s22, 8\ns_lshl_b32 s6, s9, 13\ns_add_u32 s22, s22, s6\ns_lshl_b32 s6, s3, 20\ns_add_u32 s22, s22, s6")
        a(f"s_add_u32 s22, s22, {WS_OP}")
        a(f"v_lshlrev_b32 v202, 15, v{VG}")
        a(f"v_lshl_add_u32 v202, v{VL}, 4, v202")
        a(f"v_and_b32 v3, 1, v{VG}")
        a("v_lshlrev_b32 v3, 3, v3")
        a(f"v_lshl_add_u32 v3, v{VL}, 4, v3")
        a(f"s_lshl_b32 s6, s3, 8\ns_add_u32 s6, s6, {LAT}")
        a("v_add_u32 v205, s6, v3")
        a("v_bfe_u32 v3, v1, 2, 2")
        a("v_lshlrev_b32 v3, 8, v3")
        a(f"v_lshl_add_u32 v3, v{VG}, 4, v3")
        a(f"v_add_u32 v206, {LAT}, v3")
        a("s_lshl_b32 s24, s8, 2\ns_add_u32 s24, s24, s9\ns_lshl_b32 s24, s24, 11\ns_lshl_b32 s6, s3, 7\ns_add_u32 s24, s24, s6")
        a(f"s_add_u32 s24, s24, {WS_CX}")
        a("v_bfe_u32 v3, v1, 2, 2")
        a("v_lshlrev_b32 v3, 9, v3")
        a(f"v_lshl_add_u32 v3, v{VG}, 4, v3")
        a("v_and_b32 v232, 1, v1")
        a("v_lshl_add_u32 v207, v232, 6, v3")
        a("v_and_b32 v5, 31, v1")
        a("v_lshlrev_b32 v5, 4, v5")
        a(f"v_add_u32 v239, {MX}, v5")
        a("s_lshl_b32 s6, s3, 2")
        a("v_add_u32 v238, s6, v239")
        a(f"s_lshl_b32 s6, s3, 11\ns_add_u32 s6, s6, {PX}")
        a(f"v_add_u32 v240, s6, v{VL16}")
        a(f"v_lshlrev_b32 v5, 9, v{VG}")
        a(f"v_lshl_add_u32 v5, v{VL}, 4, v5")
        a(f"v_add_u32 v241, {PX}, v5")

        def rd_a(sg):
            if sg == 2:
                for k in range(8):
                    a(f"v_add_u32 v{VQK+k}, 0x10000, v{VQK+k}")
            a.wait_vm(f"q{sg}")
            for k in range(8):
                a(f"ds_read_b128 {ar((sg*8+k)*4,4)}, v{VQK+k} offset:{(sg%2)*32768}")
        def breg(cq, cbit, kb):
            return 128 + ((cq*2 + cbit)*4 + kb)*4
        def rd_tr(sg):
            if sg == 2:
                for k in range(4):
                    a(f"v_add_u32 v{VTR+k}, 0x10000, v{VTR+k}")
            for kb in range(4):
                cq = sg ^ kb
                for cbit in range(2):
                    for hf in range(2):
                        a(f"ds_read_b64_tr_b16 {ar(breg(cq,cbit,kb)+2*hf,2)}, v{VTR+2*cbit+hf} offset:{(sg%2)*32768 + kb*8192 + hf*2048}")
        VQG = 16
        def qa_issue(j, tag):
            a(f"buffer_load_dwordx4 {vr(VQG+4*j,4)}, v{VL16}, {WS}, s{(17,28)[j//4]} offen offset:{(j%4)*1024} sc1", tag)
        def qa_check(j):
            a(f"v_max_u32 v2, v{VQG+4*j}, v{VQG+4*j+2}")
            a("v_cmp_eq_u32 vcc, -1, v2")
        def qa_act(j):
            a(f"ds_write_b128 v{VSG+j}, {vr(VQG+4*j,4)} offset:{j*1024}")
        def qa_all():
            for j in range(8):
                qa_issue(j, f"qa{j}")
        def na_poll():
            self.poll_group("na", 1, na_issue, lambda j: a("v_cmp_ne_u64 vcc, s[4:5], v[222:223]"), lambda j: None, ["na"])
        QAF = o["qa_after"]
        ensure(8 + LA)
        rd_a(0)
        self.stamp(12)
        a("s_barrier")
        rd_tr(0)
        ensure(16 + LA)
        rd_a(1)
        self.stamp(13)
        if QAF == 1:
            ensure(32)
            na_poll()
        a("s_waitcnt lgkmcnt(8)")
        a("s_barrier")
        if QAF == 1:
            qa_all()
        rd_tr(1)
        ensure(32)
        rd_a(2)
        if QAF == 2:
            na_poll()
        a("s_waitcnt lgkmcnt(8)")
        a("s_barrier")
        if QAF == 2:
            qa_all()
        rd_tr(2)
        self.stamp(4)
        rd_a(3)
        self.stamp(11)
        self.poll_group("qa", 8, qa_issue, qa_check, qa_act, [f"qa{j}" for j in range(8)])
        a("s_waitcnt lgkmcnt(0)")
        a("s_barrier")
        self.stamp(5)
        VB, VS = 16, 144
        def bread(ks):
            if ks % 8 == 0 and ks:
                sg = ks // 8
                for k in range(8):
                    a(f"v_xor_b32 v{VQB+k}, {((sg ^ (sg-1))*256)}, v{VQB+k}")
            a(f"ds_read_b128 {vr(VB+4*ks,4)}, v{VQB+ks%8}")
        def qk(k2):
            c = "0" if k2 == 0 else vr(VS, 16)
            a(f"v_mfma_f32_32x32x16_bf16 {vr(VS,16)}, {ar(4*k2,4)}, {vr(VB+4*k2,4)}, {c}")
        PD = 4
        for ks in range(32):
            bread(ks)
            if ks >= PD:
                a(f"s_waitcnt lgkmcnt({PD})")
                qk(ks - PD)
            if 9 <= ks < 25 and ks % 2:
                m = (ks - 9) // 2
                a(f"s_add_u32 m0, s19, {m*4096}")
                a(f"s_add_u32 s6, s18, {m*16384}")
                a(f"buffer_load_dwordx4 v{VUV}, {SC}, s6 offen {nt} lds", "uv")
        for k2 in range(32 - PD, 32):
            a(f"s_waitcnt lgkmcnt({31-k2})")
            qk(k2)
        rd_tr(3)
        a(f"v_max3_f32 v2, v{VS}, v{VS+1}, v{VS+2}")
        a(f"v_max3_f32 v3, v{VS+3}, v{VS+4}, v{VS+5}")
        for k in range(6, 14, 4):
            a(f"v_max3_f32 v2, v2, v{VS+k}, v{VS+k+1}")
            a(f"v_max3_f32 v3, v3, v{VS+k+2}, v{VS+k+3}")
        a(f"v_max3_f32 v2, v2, v{VS+14}, v{VS+15}")
        a("v_max_f32 v2, v2, v3")
        a("v_mov_b32 v3, v2")
        a("v_permlane32_swap_b32 v2, v3")
        a("v_max_f32 v2, v2, v3")
        a("ds_write_b32 v238, v2")
        a("s_waitcnt lgkmcnt(0)")
        a("s_barrier")
        a("ds_read_b128 v[16:19], v239")
        a("s_waitcnt lgkmcnt(0)")
        VMX = 160
        a("v_max3_f32 v2, v16, v17, v18")
        a(f"v_max_f32 v{VMX}, v2, v19")
        for k in range(16):
            a(f"v_sub_f32 v{VS+k}, v{VS+k}, v{VMX}")
        for k in range(16):
            a(f"v_exp_f32 v{VS+k}, v{VS+k}")
        for k in range(8):
            a(f"v_cvt_pk_bf16_f32 v{16+k}, v{VS+2*k}, v{VS+2*k+1}")
        a("ds_write_b128 v240, v[16:19]")
        a("ds_write_b128 v240, v[20:23] offset:1024")
        for k in range(4):
            a(f"v_pk_add_f32 {vr(VS+2*k,2)}, {vr(VS+2*k,2)}, {vr(VS+8+2*k,2)}")
        for k in range(2):
            a(f"v_pk_add_f32 {vr(VS+2*k,2)}, {vr(VS+2*k,2)}, {vr(VS+4+2*k,2)}")
        a(f"v_pk_add_f32 {vr(VS,2)}, {vr(VS,2)}, {vr(VS+2,2)}")
        a(f"v_add_f32 v2, v{VS}, v{VS+1}")
        a("v_mov_b32 v3, v2")
        a("v_permlane32_swap_b32 v2, v3")
        a("v_add_f32 v2, v2, v3")
        a("ds_write_b32 v238, v2 offset:512")
        a("s_waitcnt lgkmcnt(0)")
        a("s_barrier")
        self.stamp(6)
        VP, VO, VQ = 16, 48, 112
        for hh in range(2):
            for kb in range(4):
                a(f"ds_read_b128 {vr(VP+(hh*4+kb)*4,4)}, v241 offset:{kb*2048+hh*256}")
        a("ds_read_b128 v[164:167], v239 offset:512")
        def oreg(hh, j):
            return VO + (hh*8 + j)*4
        def cvt(hh, r, k):
            a(f"v_cvt_pk_bf16_f32 v{VQ+(hh*4+r)*4+k}, v{oreg(hh,2*k)+r}, v{oreg(hh,2*k+1)+r}")
        def ost(hh, r):
            a(f"buffer_store_dwordx4 {vr(VQ+(hh*4+r)*4,4)}, v{VL16}, {WS}, s{(16,29)[hh]} offen offset:{r*1024} sc1", f"o{hh}")
        side = []
        for r in range(4):
            side += [lambda r=r, k=k: cvt(0, r, k) for k in range(4)] + [lambda r=r: ost(0, r)]
        n = 0
        for hh in range(2):
            for kb in range(4):
                a(f"s_waitcnt lgkmcnt({8 - (hh*4+kb)})")
                for j in range(8):
                    c = "0" if kb == 0 else vr(oreg(hh, j), 4)
                    a(f"v_mfma_f32_16x16x32_bf16 {vr(oreg(hh,j),4)}, {vr(VP+(hh*4+kb)*4,4)}, {ar(breg(j%4,j//4,kb),4)}, {c}")
                    if hh == 1:
                        n += 1
                        if n > 4:
                            for _ in range(2):
                                if side:
                                    side.pop(0)()
        a("s_waitcnt lgkmcnt(0)")
        a("v_add_f32 v164, v164, v165")
        a("v_add_f32 v166, v166, v167")
        a(f"v_mov_b32 v{VMX+2}, s4\nv_mov_b32 v{VMX+3}, s5")
        a(f"v_add_f32 v{VMX+1}, v164, v166")
        for r in range(4):
            for k in range(4):
                cvt(1, r, k)
            ost(1, r)
        self.stamp(7)
        a.wait_vm("o0")
        a("s_mov_b64 exec, 0xffff")
        a(f"buffer_store_dwordx4 {vr(VMX,4)}, v219, {WS}, s20 offen sc1", "f0")
        a.wait_vm("o1")
        a("s_mov_b64 exec, 0xffff0000")
        a(f"buffer_store_dwordx4 {vr(VMX,4)}, v219, {WS}, s20 offen sc1", "f1")
        a("s_mov_b64 exec, -1")
        def ml_issue(j, tag):
            a(f"buffer_load_dwordx4 v[16:19], v218, {WS}, s21 offen sc1", tag)
        ml_issue(0, "ml")
        a("s_barrier")
        VU, VOD, VSA = 48, 80, 112
        for tt in range(2):
            for ks in range(4):
                for hf in range(2):
                    a(f"ds_read_b64_tr_b16 {vr(VU+(tt*4+ks)*4+2*hf,2)}, v{228+tt} offset:{ks*8192+hf*1024}")
        self.stamp(8)
        self.poll_group("ml", 1, ml_issue, lambda j: a("v_cmp_ne_u64 vcc, s[4:5], v[18:19]"), lambda j: None, ["ml"])
        self.stamp(9)
        a.vm_reset()
        for j in range(8):
            if j:
                a("s_add_u32 s22, s22, 0x20000")
            a(f"buffer_load_dwordx4 {vr(VOD+4*j,4)}, v202, {WS}, s22 offen sc1", f"op{j}")
        a("v_mov_b32 v20, v16")
        self.allreduce([20], [21], "v_max_f32", False)
        a("v_sub_f32 v20, v16, v20")
        a("v_exp_f32 v20, v20")
        a("v_mul_f32 v22, v20, v17")
        self.allreduce([22], [21], "v_add_f32", False)
        a("v_rcp_f32 v22, v22")
        a("v_mul_f32 v20, v20, v22")
        a("v_cvt_pk_bf16_f32 v20, v20, v20")
        a("ds_write_b32 v230, v20")
        a("s_waitcnt lgkmcnt(0)")
        a("ds_read_b128 v[16:19], v231")
        a("ds_read_b128 v[20:23], v231 offset:16")
        a("s_waitcnt lgkmcnt(0)")
        for t in range(8):
            for r in range(4):
                a(f"v_and_b32 v{VSA+4*t+r}, v{16+t}, v{VM+r}")
        a("v_mov_b32 v42, s4\nv_mov_b32 v43, s5")
        a("v_cmp_eq_u32 vcc, 1, v232")
        for t in range(8):
            a.wait_vm(f"op{t}")
            c = "0" if t == 0 else "v[24:27]"
            a(f"v_mfma_f32_16x16x32_bf16 v[24:27], {vr(VSA+4*t,4)}, {vr(VOD+4*t,4)}, {c}")
        a("v_cvt_pk_bf16_f32 v28, v24, v25")
        a("v_cvt_pk_bf16_f32 v29, v26, v27")
        a("ds_write_b64 v205, v[28:29]")
        a("s_waitcnt lgkmcnt(0)")
        a("s_barrier")
        for ks in range(4):
            a(f"ds_read_b128 {vr(144+4*ks,4)}, v206 offset:{64*ks}")
        for ks in range(4):
            a(f"s_waitcnt lgkmcnt({3-ks})")
            for tt in range(2):
                c = "0" if ks == 0 else vr(32+4*tt, 4)
                a(f"v_mfma_f32_16x16x32_bf16 {vr(32+4*tt,4)}, {vr(VU+(tt*4+ks)*4,4)}, {vr(144+4*ks,4)}, {c}")
        a("v_cvt_pk_bf16_f32 v28, v32, v33")
        a("v_cvt_pk_bf16_f32 v29, v34, v35")
        a("v_cvt_pk_bf16_f32 v30, v36, v37")
        a("v_cvt_pk_bf16_f32 v31, v38, v39")
        a("v_cndmask_b32 v40, v28, v30, vcc")
        a("v_cndmask_b32 v41, v29, v31, vcc")
        a("s_mov_b32 s6, 0x33333333\ns_mov_b32 exec_lo, s6\ns_mov_b32 exec_hi, s6")
        a(f"buffer_store_dwordx4 v[40:43], v207, {WS}, s24 offen sc1")
        self.stamp(10)
        self.stamps_out((0, [(0,0),(1,1),(3,2),(4,3),(5,4),(7,5),(9,6),(10,7),(15,15)]))
        a("s_endpgm")

    def notatt(self):
        a, o = self.a, self.o
        nt = o["nt"]
        a.vm_reset()
        ASTG = 147456
        VG, VL, VQ = 14, 15, 16
        self.srd(44, 24, 512 * 8192)
        a(f"v_lshrrev_b32 v{VG}, 4, v1\nv_and_b32 v{VL}, 15, v1")
        for k in range(4):
            a(f"v_mov_b32 v{VQ+k}, -1")
        a(f"s_cmp_lt_u32 s2, {WG_QA}")
        a("s_cbranch_scc1 L_ffn_a")
        a(f"s_sub_u32 s15, s2, {WG_QA}")
        a("s_and_b32 s10, s15, 3\ns_lshl_b32 s10, s10, 3\ns_lshr_b32 s6, s15, 3\ns_or_b32 s10, s10, s6")
        a("s_and_b32 s6, s15, 4\ns_add_u32 s11, s6, s3")
        a("s_lshl_b32 s14, s10, 10\ns_lshl_b32 s6, s11, 7\ns_add_u32 s14, s14, s6")
        a(f"s_add_u32 s14, s14, {WS_QA}")
        a(f"v_lshlrev_b32 v36, 15, v{VG}")
        a(f"v_lshl_add_u32 v36, v{VL}, 3, v36")
        a("s_lshl_b32 s9, s11, 19\ns_lshl_b32 s6, s10, 8\ns_add_u32 s9, s9, s6")
        a(f"v_lshlrev_b32 v6, 13, v{VG}")
        a(f"v_lshl_add_u32 v6, v{VL}, 4, v6")
        a("s_lshl_b32 s12, s3, 14")
        a("s_waitcnt lgkmcnt(0)")
        a(f"buffer_load_dwordx2 v[8:9], off, {WS}, 0 sc1", "ep")
        a(f"buffer_store_dwordx2 {vr(VQ,2)}, v36, {WS}, s14 offen sc1", "clr")
        def uk(ts):
            for t in ts:
                a(f"v_xor_b32 v7, {16*t}, v6")
                a(f"s_add_u32 m0, s12, {t*1024}")
                a(f"s_add_u32 s6, s9, {t*4*8192}")
                a(f"buffer_load_dwordx4 v7, {SA}, s6 offen {nt} lds", "uk")
        uk(range(10))
        VSA = 20
        self.stage_addr(VSA, ASTG)
        a(f"s_lshl_b32 s13, s10, 13\ns_add_u32 s13, s13, {WS_QP}")
        a(f"s_lshl_b32 s27, s3, 12\ns_lshl_b32 s6, s15, 6\ns_add_u32 s27, s27, s6\ns_add_u32 s27, s27, {WS_NA}")
        a.wait_vm("clr")
        self.get_tag(8)
        self.notice(26, 88)
        self.stamp(1)
        uk(range(10, 16))
        self.stage_issue("qp", 13, 40, VSA)
        a(f"v_xor_b32 v2, v{VG}, v{VL}")
        a("v_lshlrev_b32 v2, 4, v2")
        a(f"v_lshl_add_u32 v2, v{VL}, 10, v2")
        a("v_add_u32 v32, s12, v2")
        for ks in range(1, 4):
            a(f"v_xor_b32 v{32+ks}, {64*ks}, v32")
        a.wait_vm("uk")
        self.stamp(2)
        for tt in range(4):
            for ks in range(4):
                a(f"ds_read_b128 {ar((tt*4+ks)*4,4)}, v{32+ks} offset:{tt*256}")
        self.stage_partials("qp", 13, 40, VSA, ASTG, 48, issued=True)
        self.stamp(3)
        for ks in range(4):
            a(f"s_waitcnt lgkmcnt({3-ks})")
            for tt in range(4):
                c = "0" if ks == 0 else vr(64+4*tt, 4)
                a(f"v_mfma_f32_16x16x32_bf16 {vr(64+4*tt,4)}, {vr(48+4*ks,4)}, {ar((tt*4+ks)*4,4)}, {c}")
        sc = f2u(128 ** -0.5 * math.log2(math.e))
        for tt in range(4):
            a(f"v_add_f32 v{64+4*tt}, v{64+4*tt}, v{65+4*tt}")
            a(f"v_add_f32 v{66+4*tt}, v{66+4*tt}, v{67+4*tt}")
        for tt in range(4):
            a(f"v_add_f32 v{80+tt}, v{64+4*tt}, v{66+4*tt}")
        for tt in range(4):
            a(f"v_mul_f32 v{80+tt}, {sc}, v{80+tt}")
        a("v_cvt_pk_bf16_f32 v84, v80, v81")
        a("v_cvt_pk_bf16_f32 v85, v82, v83")
        a(f"buffer_store_dwordx2 v[84:85], v36, {WS}, s14 offen sc1")
        self.stamp(4)
        a(f"s_cmp_ge_u32 s2, {WG_WO}")
        a("s_cbranch_scc1 L_notffn")

    def ffn(self):
        a, o = self.a, self.o
        nt = o["nt"]
        XN, RED = 73728, 73728 + 10240
        VM, VG, VL = 10, 14, 15
        VOA, VE, VX, VT, VQ = 4, 8, 152, 160, 16
        def head():
            self.srd(48, 72, 4608 * 1152)
            a("s_load_dwordx4 s[96:99], s[0:1], 56")
            a(f"s_sub_u32 s15, s2, {WG_FFN}")
            a("s_mov_b32 s26, s15")
            self.outp_addr(VOA, 26)
        head()
        self.load_epoch_x(None, VX)
        self.outp_store(VOA, 26, VQ, VQ, VQ, "clr")
        a("s_mov_b32 s16, 3")
        a("s_branch L_ffn_c")
        a.label("L_ffn_a")
        head()
        a("s_waitcnt lgkmcnt(0)")
        self.load_epoch_x(VE, VX)
        self.outp_store(VOA, 26, VQ, VQ, VQ, "clr")
        a.label("L_ffn_c")
        a.vm_reset()
        sr = o["slowres"]
        a(f"s_sub_u32 s6, s15, 9\ns_add_u32 s7, s6, {7-sr}\ns_mul_i32 s7, s7, 37\ns_lshr_b32 s7, s7, 8\ns_add_u32 s8, s6, s7")
        a(f"s_lshl_b32 s6, s15, 3\ns_add_u32 s6, s6, {sr}")
        a("s_cmp_lt_u32 s15, 9\ns_cselect_b32 s8, s6, s8")
        VWD, VWT = 23, 24
        self.w_dma_setup(VWD)
        a("s_mul_i32 s29, s3, 9216")
        a(f"s_mul_i32 s28, s8, {64*1152}\ns_add_u32 s28, s28, s29")
        a("s_lshl_b32 s6, s3, 2")
        a(f"v_add_u32 v28, s6, v{VG}")
        a(f"v_mul_u32_u24 v2, {36*9216}, v28")
        a("v_and_b32 v3, 7, v1")
        a("v_lshl_add_u32 v2, v3, 4, v2")
        a("s_lshl_b32 s6, s8, 7")
        a("v_add_u32 v2, s6, v2")
        a("v_mov_b32 v3, 0")
        a(f"v_cmp_gt_u32 vcc, 8, v{VL}")
        a("s_waitcnt lgkmcnt(0)")
        a("v_mov_b32 v26, s98\nv_mov_b32 v27, s99\nv_mov_b32 v29, s96\nv_mov_b32 v30, s97")
        a("v_cndmask_b32 v26, v26, v29, vcc")
        a("v_cndmask_b32 v27, v27, v30, vcc")
        a("v_lshl_add_u64 v[26:27], v[2:3], 0, v[26:27]")
        a("s_mov_b32 s30, 9216\ns_mov_b32 s31, 0")
        VW = 32
        order = []
        iw, it = 0, 0
        R = o["ffn_r"]
        while iw < 18 or it < 36:
            if iw < 18:
                order.append(("d", iw)); iw += 1
            for _ in range(R if iw < 18 else 36):
                if it < 36:
                    order.append(("t", it)); it += 1
        last_d = max(c for c, x in enumerate(order) if x[0] == "d")
        st = dict(n=0)
        def ensure(k):
            while st["n"] < min(k, 54):
                c = st["n"]
                kind, t = order[c]
                if kind == "d":
                    self.w_dma_issue(VWD, SB, 28, t // 9, f"i{c}", [t % 9])
                else:
                    a(f"global_load_dwordx4 {vr(VW+4*t,4)}, v[26:27], off {nt}", f"i{c}")
                    if t < 35:
                        a("v_lshl_add_u64 v[26:27], v[26:27], 0, s[30:31]")
                st["n"] += 1
        W1, N1, W2 = o["ffn_w1"], o["ffn_n1"], o["ffn_w2"]
        a("s_sub_u32 s6, s15, 9\ns_cmp_lt_u32 s6, 55\ns_cselect_b32 s17, 1, 0")
        ensure(W1)
        self.masks(VM)
        self.w_tr_addr(VWT)
        a("v_mul_u32_u24 v28, 144, v28")
        a("v_bfe_u32 v2, v1, 3, 1")
        a("v_mul_u32_u24 v2, 2304, v2")
        a(f"v_add_u32 v28, v28, v2\nv_add_u32 v28, {XN}, v28")
        a(f"s_lshl_b32 s6, s3, 11\ns_add_u32 s6, s6, {RED}")
        a("v_lshl_add_u32 v20, v1, 4, s6")
        a("v_bfe_u32 v2, v1, 2, 2")
        a("v_lshlrev_b32 v2, 9, v2")
        a("v_and_b32 v3, 1, v1")
        a("v_lshl_add_u32 v2, v3, 8, v2")
        a("v_bfe_u32 v3, v1, 1, 1")
        a("v_lshl_add_u32 v2, v3, 6, v2")
        a(f"v_lshl_add_u32 v2, v{VG}, 4, v2")
        a(f"v_add_u32 v21, {RED}, v2")
        a(f"s_waitcnt vmcnt({st['n']})")
        self.stamp(7)
        self.get_tag(VE)
        self.notice(26, VQ)
        self.layernorm(VX, VT, XN)
        a("s_waitcnt lgkmcnt(0)")
        a("s_barrier")
        VXN = 176
        for ch in range(2):
            for k in range(9):
                a(f"ds_read_b128 {vr(VXN+36*ch+4*k,4)}, v28 offset:{ch*4608+16*k}")
        VA0 = (248, 252)
        acc = (16, 28)
        a("s_cmp_eq_u32 s17, 0")
        for c in range(W1, N1 + W1):
            L = a.newlabel("ffn_nw")
            a(f"s_cbranch_scc1 {L}")
            a(f"s_waitcnt vmcnt({W1-1})")
            a.label(L)
            ensure(c + 1)
            a("s_cmp_eq_u32 s17, 0")
        trdone = False
        for c in range(54):
            ensure(c + W2)
            kind, t = order[c]
            if kind == "d":
                continue
            for ch in range(2):
                if t == 0 and ch == 0:
                    a("s_waitcnt lgkmcnt(0)")
                for r in range(4):
                    a(f"v_and_b32 v{VA0[ch]+r}, v{VXN+36*ch+t}, v{VM+r}")
                if ch == 0:
                    a.wait_vm(f"i{c}")
                    if c > last_d and not trdone:
                        trdone = True
                        a("s_barrier")
                        self.w_tr_reads(VWT, 2)
                cc = "0" if t == 0 else vr(acc[ch], 4)
                a(f"v_mfma_f32_16x16x32_bf16 {vr(acc[ch],4)}, {vr(VA0[ch],4)}, {vr(VW+4*t,4)}, {cc}")
        assert trdone
        a.label("L_ffn_skip")
        self.stamp(5)
        a(f"ds_write_b128 v20, {vr(acc[0],4)}")
        a(f"ds_write_b128 v20, {vr(acc[1],4)} offset:1024")
        a("v_and_b32 v3, 3, v1")
        for k in range(4):
            a(f"v_cmp_eq_u32 vcc, {k}, v3")
            a(f"v_cndmask_b32 v{VM+k}, 0, -1, vcc")
        a("s_waitcnt lgkmcnt(0)")
        a("s_barrier")
        for w in range(4):
            a(f"ds_read_b128 {vr(32+4*w,4)}, v21 offset:{2048*w}")
        for w in range(4):
            a(f"ds_read_b128 {vr(48+4*w,4)}, v21 offset:{2048*w+128}")
        a("s_mov_b32 s7, 0xffff0000")
        for base, wt in ((32, 4), (48, 0)):
            a(f"s_waitcnt lgkmcnt({wt})")
            for k in range(2):
                a(f"v_pk_add_f32 {vr(base+2*k,2)}, {vr(base+2*k,2)}, {vr(base+4+2*k,2)}")
                a(f"v_pk_add_f32 {vr(base+8+2*k,2)}, {vr(base+8+2*k,2)}, {vr(base+12+2*k,2)}")
            for k in range(2):
                a(f"v_pk_add_f32 {vr(base+2*k,2)}, {vr(base+2*k,2)}, {vr(base+8+2*k,2)}")
            a(f"v_cvt_pk_bf16_f32 v{base+4}, v{base}, v{base+1}")
            a(f"v_cvt_pk_bf16_f32 v{base+5}, v{base+2}, v{base+3}")
            a(f"v_lshlrev_b32 v{base}, 16, v{base+4}\nv_and_b32 v{base+1}, s7, v{base+4}")
            a(f"v_lshlrev_b32 v{base+2}, 16, v{base+5}\nv_and_b32 v{base+3}, s7, v{base+5}")
            if base == 32:
                nl2e = f2u(-math.log2(math.e))
                for k in range(4):
                    a(f"v_mul_f32 v{36+k}, {nl2e}, v{32+k}")
                for k in range(4):
                    a(f"v_exp_f32 v{36+k}, v{36+k}")
                for k in range(4):
                    a(f"v_add_f32 v{36+k}, 1.0, v{36+k}")
                for k in range(4):
                    a(f"v_rcp_f32 v{36+k}, v{36+k}")
                for k in range(4):
                    a(f"v_mul_f32 v{32+k}, v{32+k}, v{36+k}")
                a("v_cvt_pk_bf16_f32 v36, v32, v33\nv_cvt_pk_bf16_f32 v37, v34, v35")
                a("v_lshlrev_b32 v32, 16, v36\nv_and_b32 v33, s7, v36\nv_lshlrev_b32 v34, 16, v37\nv_and_b32 v35, s7, v37")
        for k in range(4):
            a(f"v_mul_f32 v{32+k}, v{32+k}, v{48+k}")
        a("v_cvt_pk_bf16_f32 v36, v32, v33\nv_cvt_pk_bf16_f32 v37, v34, v35")
        for ks in range(2):
            for q2 in range(2):
                for m in range(2):
                    a(f"v_and_b32 v{40+4*ks+2*q2+m}, v{36+m}, v{VM+2*ks+q2}")
        self.dense_out(40, 2, 64, VOA, 26)
        self.stamp(6)
        self.stamps_out((128, [(7,8),(5,9),(6,10)]))
        a("s_endpgm")

    def wo(self):
        a, o = self.a, self.o
        a.vm_reset()
        ASTG = 147456
        self.srd(48, 40, 32 * 147456)
        a(f"s_sub_u32 s8, s2, {WG_WO}")
        VOA, VE, VQ, VSA, VWD, VWT = 4, 8, 16, 20, 23, 24
        a("s_add_u32 s26, s8, 72")
        self.outp_addr(VOA, 26)
        self.w_dma_setup(VWD)
        a("s_mul_i32 s29, s3, 9216")
        a("s_mul_i32 s28, s8, 147456\ns_add_u32 s28, s28, s29")
        self.outp_store(VOA, 26, VQ, VQ, VQ, "clr")
        a("s_waitcnt lgkmcnt(0)")
        if not o["x_nowo"]:
            self.w_dma_issue(VWD, SB, 28, 0, "w")
        a.wait_vm("clr")
        self.notice(26, VQ)
        for m in range(1, 0 if o["x_nowo"] else 4):
            self.w_dma_issue(VWD, SB, 28, m, "w")
        self.w_tr_addr(VWT)
        a(f"s_lshl_b32 s13, s8, 13\ns_add_u32 s13, s13, {WS_CX}")
        a("s_waitcnt vmcnt(0)")
        a("s_barrier")
        self.stamp(5)
        self.w_tr_reads(VWT, 4)
        a.vm_reset()
        self.stage_partials("cx", 13, 40, VSA, ASTG, 48)
        self.stamp(6)
        a("s_waitcnt lgkmcnt(0)")
        self.dense_out(48, 4, 64, VOA, 26)
        self.stamp(7)
        self.stamps_out((200, [(5,11),(7,12)]))
        a("s_endpgm")

    def fin(self):
        a, o = self.a, self.o
        a.vm_reset()
        a(f"s_cmp_ge_u32 s2, {WG_FIN + N_FIN}")
        a("s_cbranch_scc1 L_fin_end")
        self.srd(56, 80, 4608)
        a(f"s_sub_u32 s8, s2, {WG_FIN}")
        a("s_lshr_b32 s6, s3, 1\ns_lshl_b32 s9, s8, 1\ns_add_u32 s9, s9, s6")
        a("s_and_b32 s10, s3, 1")
        a("s_mul_i32 s11, s9, 57\ns_lshr_b32 s11, s11, 9")
        a("s_mul_i32 s6, s11, 9\ns_sub_u32 s12, s9, s6")
        VG, VL = 14, 15
        a(f"v_lshrrev_b32 v{VG}, 4, v1\nv_and_b32 v{VL}, 15, v1")
        a("s_and_b32 s6, s12, 3\ns_mul_i32 s6, s6, 576\ns_lshr_b32 s7, s12, 2\ns_lshl_b32 s7, s7, 8\ns_add_u32 s6, s6, s7")
        a("s_lshl_b32 s7, s11, 4\ns_add_u32 s6, s6, s7")
        a(f"v_lshl_add_u32 v4, v{VG}, 6, v{VL}")
        a("v_bfe_u32 v2, v1, 2, 2")
        a("v_mul_u32_u24 v2, 576, v2")
        a("v_and_b32 v3, 3, v1")
        a("v_lshl_add_u32 v2, v3, 2, v2")
        a(f"v_add_u32 v2, v2, v{VG}")
        a("s_cmp_eq_u32 s12, 8")
        a("s_cselect_b64 vcc, -1, 0")
        a("v_cndmask_b32 v4, v4, v2, vcc")
        a("v_add_u32 v4, s6, v4")
        a("v_lshlrev_b32 v4, 1, v4")
        a(f"v_mul_u32_u24 v5, 9216, v{VG}")
        a(f"v_lshl_add_u32 v5, v{VL}, 4, v5")
        a(f"s_mul_i32 s13, s10, {4*9216}\ns_lshl_b32 s6, s9, 8\ns_add_u32 s13, s13, s6\ns_add_u32 s13, s13, {WS_OUTP}")
        a("v_min_u32 v2, 51, v1")
        a("v_lshrrev_b32 v3, 2, v2")
        a("v_and_b32 v2, 3, v2")
        a("v_lshl_add_u32 v2, v3, 3, v2")
        a("v_lshlrev_b32 v6, 6, v2")
        a(f"s_mul_i32 s14, s11, {104*64}\ns_lshl_b32 s6, s10, 8\ns_add_u32 s14, s14, s6\ns_add_u32 s14, s14, {WS_NOTICE}")
        a("s_waitcnt lgkmcnt(0)")
        a(f"buffer_load_ushort v10, v4, {XS}, 0 offen", "x")
        a("s_lshl_b32 s15, s8, 2\ns_add_u32 s15, s15, s3")
        a("v_mov_b32 v16, s4\nv_mov_b32 v17, s5")
        self.poll_group("nt", 1, lambda j, tag: a(f"buffer_load_dwordx4 v[20:23], v6, {WS}, s14 offen sc1", tag),
                        lambda j: a("v_cmp_ne_u64 vcc, s[4:5], v[22:23]"), lambda j: None)
        self.stamp(5)
        VD = 32
        def issue(j, tag):
            a(f"s_add_u32 s6, s13, {j*8*9216}")
            a(f"buffer_load_dwordx4 {vr(VD+4*j,4)}, v5, {WS}, s6 offen sc1", tag)
        def check(j):
            a(f"v_max3_u32 v2, v{VD+4*j}, v{VD+4*j+1}, v{VD+4*j+2}")
            a(f"v_max_u32 v2, v2, v{VD+4*j+3}")
            a("v_cmp_eq_u32 vcc, -1, v2")
        a.vm_reset()
        self.poll_group("pre", 1, issue, check, lambda j: None)
        self.stamp(6)
        a.vm_reset()
        self.poll_group("pa", 12, lambda j, tag: issue(j+1, tag), lambda j: check(j+1), lambda j: None)
        self.stamp(7)
        n = 13
        while n > 1:
            h = n // 2
            for j in range(h):
                src = n - 1 - j
                for k in range(2):
                    a(f"v_pk_add_f32 {vr(VD+4*j+2*k,2)}, {vr(VD+4*j+2*k,2)}, {vr(VD+4*src+2*k,2)}")
            n -= h
        a(f"v_permlane32_swap_b32 v{VD}, v{VD+2}")
        a(f"v_permlane32_swap_b32 v{VD+1}, v{VD+3}")
        a(f"v_add_f32 v{VD}, v{VD}, v{VD+2}")
        a(f"v_add_f32 v{VD+1}, v{VD+1}, v{VD+3}")
        a(f"v_permlane16_swap_b32 v{VD}, v{VD+1}")
        a(f"v_add_f32 v{VD}, v{VD}, v{VD+1}")
        a("s_lshr_b32 s6, s3, 1\ns_lshl_b32 s6, s6, 8")
        a("v_lshl_add_u32 v2, v1, 2, s6")
        a("s_cmp_eq_u32 s10, 0")
        a("s_cbranch_scc1 L_fin_even")
        a(f"ds_write_b32 v2, v{VD}")
        a("s_waitcnt lgkmcnt(0)")
        a("s_barrier")
        a("s_cmp_lg_u32 s15, 1")
        a("s_cbranch_scc1 L_fin_end")
        a("s_mov_b64 exec, 1")
        a(f"buffer_store_dwordx2 v[16:17], off, {WS}, 0 sc1")
        a("s_branch L_fin_end")
        a.label("L_fin_even")
        a("v_lshlrev_b32 v10, 16, v10")
        a(f"v_add_f32 v{VD}, v{VD}, v10")
        a("s_barrier")
        a("ds_read_b32 v3, v2")
        a("s_waitcnt lgkmcnt(0)")
        a(f"v_add_f32 v{VD}, v{VD}, v3")
        a(f"v_cvt_pk_bf16_f32 v{VD}, v{VD}, v{VD}")
        a(f"buffer_store_short v{VD}, v4, {SD}, 0 offen")
        a.label("L_fin_end")
        self.stamp(8)
        self.stamps_out((232, [(0,13),(8,14)]))
        a("s_endpgm")

    def build(self):
        a = self.a
        self.preamble()
        self.att()
        a.label("L_notatt")
        self.notatt()
        self.ffn()
        a.label("L_notffn")
        a(f"s_cmp_ge_u32 s2, {WG_FIN}")
        a("s_cbranch_scc1 L_fin")
        self.wo()
        a.label("L_fin")
        self.fin()
        a.label("L_end")
        a("s_endpgm")
        a.label("L_codeend")
        body = a.finalize()
        head = open(f"cdna_kernels/{NAME}.s.ref").read().split("; @launch")[0]
        txt = head + f"; @launch grid=({NWG},1,1) block=(256,1,1) lds=163840\n"
        txt += f""".amdgcn_target "amdgcn-amd-amdhsa--gfx950"
.text
.globl {NAME}_kernel
.p2align 8
.type {NAME}_kernel,@function
{NAME}_kernel:
{body}.section .rodata,"a"
.p2align 6
.amdhsa_kernel {NAME}_kernel
  .amdhsa_next_free_vgpr 512
  .amdhsa_next_free_sgpr 102
  .amdhsa_accum_offset 256
  .amdhsa_group_segment_fixed_size 0
  .amdhsa_kernarg_size 104
  .amdhsa_user_sgpr_count 2
  .amdhsa_user_sgpr_kernarg_segment_ptr 1
  .amdhsa_system_sgpr_workgroup_id_x 1
.end_amdhsa_kernel
"""
        return txt

def gen(**kw):
    return Gen(**kw).build()

if __name__ == "__main__":
    out = sys.argv[1] if len(sys.argv) > 1 else f"cdna_kernels/{NAME}.s"
    kw = {}
    for x in sys.argv[2:]:
        k, v = x.split("=")
        kw[k] = eval(v)
    open(out, "w").write(gen(**kw))
```
